```python
import torch

def _softmax(x, axis=-1):
    return torch.softmax(x, dim=axis)
def _gelu(x):
    return torch.nn.functional.gelu(x, approximate="tanh")
def _silu(x):
    return torch.nn.functional.silu(x)
def _sigmoid(x):
    return torch.sigmoid(x)
def _layernorm(x, axis=-1, eps=1e-5):
    m = x.mean(dim=axis, keepdim=True)
    v = x.var(dim=axis, keepdim=True, unbiased=False)
    return (x - m) / torch.sqrt(v + eps)
def _scatter_add(tgt, idx, src, axis=0):
    return tgt.clone().index_add_(axis, idx, src)
def _segment_sum(src, seg, n):
    out = torch.zeros((n,) + src.shape[1:], dtype=src.dtype)
    return out.index_add_(0, seg, src)
def _pad(x, pw):
    flat = tuple(v for pair in reversed(pw) for v in pair)
    return torch.nn.functional.pad(x, flat)

kernel_name = 'gated_mix__ssm_conv_s4__swiglu_ffn__prompt'

def setup_inputs():

    _w = (lambda a: (lambda t: t.to(torch.bfloat16) if t.is_floating_point() else t)(torch.as_tensor(a)))
    def _A_setup():
        B, L, D, N = 1, 2048, 640, 192
        A_re = -(lambda _x: torch.exp(torch.as_tensor(_x)))((lambda *s: torch.randn(*s, dtype=torch.bfloat16) * 3.2)(D, N))
        A_im = torch.pi * (lambda *s: torch.randn(*s, dtype=torch.bfloat16) * 0.05)(D, N)
        B_re = (lambda *s: torch.randn(*s, dtype=torch.bfloat16) * 0.1)(D, N)
        B_im = (lambda *s: torch.randn(*s, dtype=torch.bfloat16) * 0.1)(D, N)
        C_re = (lambda *s: torch.randn(*s, dtype=torch.bfloat16) * 0.1)(D, N)
        C_im = (lambda *s: torch.randn(*s, dtype=torch.bfloat16) * 0.1)(D, N)
        log_dt = (lambda *s: torch.randn(*s, dtype=torch.bfloat16) * 0.05)(D) * 0.5 - 4.0
        Dskip = (lambda *s: torch.randn(*s, dtype=torch.bfloat16) * 0.05)(D)
        return {
            "u": _w((lambda *s: torch.randn(*s, dtype=torch.bfloat16) * 0.05)(B, L, D)),
            "A_re": _w(A_re),
            "A_im": _w(A_im),
            "B_re": _w(B_re),
            "B_im": _w(B_im),
            "C_re": _w(C_re),
            "C_im": _w(C_im),
            "log_dt": _w(log_dt),
            "Dskip": _w(Dskip),
        }
    _A_in = _A_setup()

    def _B_setup():
        B, S, D, F = 1, 2048, 640, 1536
        return {
            "x": _w((lambda *s: torch.randn(*s, dtype=torch.bfloat16) * 0.05)(B, S, D)),
            "w_gate": _w((lambda *s: torch.randn(*s, dtype=torch.bfloat16) * 0.05)(D, F)),
            "w_up": _w((lambda *s: torch.randn(*s, dtype=torch.bfloat16) * 0.05)(D, F)),
            "w_down": _w((lambda *s: torch.randn(*s, dtype=torch.bfloat16) * 0.05)(F, D)),
        }
    _B_in = _B_setup()

    return {
        "A_u": _A_in["u"],
        "A_A_re": _A_in["A_re"],
        "A_A_im": _A_in["A_im"],
        "A_B_re": _A_in["B_re"],
        "A_B_im": _A_in["B_im"],
        "A_C_re": _A_in["C_re"],
        "A_C_im": _A_in["C_im"],
        "A_log_dt": _A_in["log_dt"],
        "A_Dskip": _A_in["Dskip"],
        "B_x": _B_in["x"],
        "B_w_gate": _B_in["w_gate"],
        "B_w_up": _B_in["w_up"],
        "B_w_down": _B_in["w_down"],
        "gate_w": _w((lambda *s: torch.randn(*s, dtype=torch.bfloat16) * 0.05)(640) * 16.0),
    }

def reference(A_u, A_A_re, A_A_im, A_B_re, A_B_im, A_C_re, A_C_im, A_log_dt, A_Dskip, B_x, B_w_gate, B_w_up, B_w_down, gate_w):
    def _A_ref(u, A_re, A_im, B_re, B_im, C_re, C_im, log_dt, Dskip):
        Bsz, L, D = u.shape
        dt = torch.exp(log_dt)[:, None]
        A = A_re + 1j * A_im
        Bc = B_re + 1j * B_im
        Cc = C_re + 1j * C_im
        logdA = dt * A
        dB = dt * Bc
        l = (lambda x, dt: x.to(dt))(torch.arange(L), A_re.dtype)
        P = torch.exp(logdA[:, :, None] * l[None, None, :])
        K = torch.einsum("dn,dnl,dn->dl", Cc, P, dB).real
        L2 = 2 * L
        Kp = _pad(K, ((0, 0), (0, L)))
        up = (lambda x, *d: x.permute(*d))(u, 0, 2, 1)
        up = _pad(up, ((0, 0), (0, 0), (0, L)))
        Kf = (lambda x, axes=(-2,-1): torch.fft.rfft2(x.float(), dim=axes))(Kp[:, None, :], axes=(-2, -1))
        Uf = (lambda x, axes=(-2,-1): torch.fft.rfft2(x.float(), dim=axes))(up[:, :, None, :], axes=(-2, -1))
        Yf = Uf * Kf[None, :, :, :]
        y = (lambda x, s, axes=(-2,-1): torch.fft.irfft2(x, s=s, dim=axes).to(torch.bfloat16))(Yf, (1, L2), axes=(-2, -1))[:, :, 0, :L]
        y = (lambda x, *d: x.permute(*d))(y, 0, 2, 1) + u * Dskip[None, None, :]
        return y

    def _B_ref(x, w_gate, w_up, w_down):
        g = _silu(x @ w_gate)
        u = x @ w_up
        return (g * u) @ w_down

    x = A_u
    g = _sigmoid((x * gate_w).sum(-1, keepdims=True))
    a = _A_ref(x, A_A_re, A_A_im, A_B_re, A_B_im, A_C_re, A_C_im, A_log_dt, A_Dskip)
    b = _B_ref(x, B_w_gate, B_w_up, B_w_down)
    return g * a + (1 - g) * b
```

```python
import re

def v(i, n=1):
    return f"v{i}" if n == 1 else f"v[{i}:{i+n-1}]"
def s(i, n=1):
    return f"s{i}" if n == 1 else f"s[{i}:{i+n-1}]"

class Asm:
    def __init__(self):
        self.lines = []
        self.vm = []
        self.lg = []
        self.uid = 0
    def __call__(self, text):
        for ln in text.split('\n'):
            ln = ln.strip()
            if ln: self.lines.append(ln)
    def label(self, name): self.lines.append(name + ':')
    def newlabel(self, base):
        self.uid += 1
        return f"{base}_{self.uid}"
    def vmem(self, text, tag=None):
        self(text); self.vm.append(tag)
    def lds(self, text, tag=None):
        self(text); self.lg.append(tag)
    def wait_vm(self, *tags):
        idx = [i for i, t in enumerate(self.vm) if t in tags]
        if not idx: return
        last = max(idx); n = len(self.vm) - 1 - last
        n = min(n, 63)
        self(f"s_waitcnt vmcnt({n})")
        self.vm = self.vm[len(self.vm) - n:] if n else []
    def wait_lg(self, *tags):
        idx = [i for i, t in enumerate(self.lg) if t in tags]
        if not idx: return
        last = max(idx); n = len(self.lg) - 1 - last
        n = min(n, 15)
        self(f"s_waitcnt lgkmcnt({n})")
        self.lg = self.lg[len(self.lg) - n:] if n else []
    def wait_vm_all(self):
        self("s_waitcnt vmcnt(0)"); self.vm = []
    def wait_lg_all(self):
        self("s_waitcnt lgkmcnt(0)"); self.lg = []
    def wait_all(self):
        self("s_waitcnt vmcnt(0) lgkmcnt(0)"); self.vm = []; self.lg = []
    def reset_counts(self):
        self.vm = []; self.lg = []

TRANS = ('v_exp_f32', 'v_log_f32', 'v_rcp_f32', 'v_rsq_f32', 'v_sqrt_f32', 'v_sin_f32', 'v_cos_f32', 'v_rcp_iflag_f32')
def regs_of(op):
    op = op.strip()
    neg = op.lstrip('-')
    if neg.startswith('abs(') : neg = neg[4:-1]
    if neg.startswith('|'): neg = neg.strip('|')
    m = re.fullmatch(r'([vsa])(\d+)', neg)
    if m: return {(m.group(1), int(m.group(2)))}
    m = re.fullmatch(r'([vsa])\[(\d+):(\d+)\]', neg)
    if m: return {(m.group(1), i) for i in range(int(m.group(2)), int(m.group(3)) + 1)}
    if neg == 'vcc': return {('s', 'vcc')}
    if neg in ('vcc_lo', 'vcc_hi'): return {('s', 'vcc')}
    if neg == 'm0': return {('s', 'm0')}
    if neg == 'exec': return {('s', 'exec')}
    return set()

class Ins:
    __slots__ = ('text', 'op', 'ops', 'mods', 'kind', 'dst', 'src', 'states', 'label', 'target', 'passes', 'A', 'B', 'C', 'dpp', 'trans', 'sdst', 'wide_store_data', 'lds_dma', 'perm')
def parse(text):
    I = Ins(); I.text = text; I.label = None; I.target = None; I.kind = 'other'
    I.dst = set(); I.src = set(); I.states = 1; I.passes = 0; I.A = I.B = I.C = set(); I.dpp = False; I.trans = False
    I.sdst = set(); I.wide_store_data = set(); I.lds_dma = False; I.perm = False
    if text.endswith(':'):
        I.label = text[:-1]; I.kind = 'label'; I.states = 0; I.op = ''; return I
    if text.startswith('.') or text.startswith(';'):
        I.kind = 'dir'; I.states = 0; I.op = ''; return I
    t = text.split(';')[0].strip()
    parts = t.split(None, 1)
    op = parts[0]; I.op = op
    rest = parts[1] if len(parts) > 1 else ''
    ops = []; depth = 0; cur = ''
    for ch in rest:
        if ch in '[(': depth += 1
        if ch in '])': depth -= 1
        if ch == ',' and depth == 0: ops.append(cur.strip()); cur = ''
        else: cur += ch
    if cur.strip(): ops.append(cur.strip())
    mods = ''
    if ops:
        last = ops[-1].split(None, 1)
        ops[-1] = last[0]
        if len(last) > 1: mods = last[1]
    I.ops = ops; I.mods = mods
    R = [regs_of(o) for o in ops]
    if op == 's_nop':
        I.kind = 'salu'; I.states = int(ops[0], 0) + 1; return I
    if op.startswith('s_cbranch') or op == 's_branch':
        I.kind = 'branch'; I.target = ops[0]; return I
    if op == 's_endpgm': I.kind = 'end'; return I
    if op.startswith('v_mfma'):
        I.kind = 'mfma'; I.dst = R[0]; I.A = R[1]; I.B = R[2]; I.C = R[3]; I.src = R[1] | R[2] | R[3]
        I.passes = 8 if '32x32' in op else 4
        return I
    if op.startswith('v_'):
        I.kind = 'valu'
        base = op.replace('_e32', '').replace('_e64', '').replace('_dpp', '').replace('_sdwa', '')
        I.trans = base in TRANS
        I.dpp = ('_dpp' in op) or any(k in mods for k in ('row_', 'quad_perm', 'wave_', 'row_bcast'))
        if base.startswith('v_cmp'):
            I.sdst = R[0]; I.src = set().union(*R[1:])
        elif base in ('v_readfirstlane_b32', 'v_readlane_b32'):
            I.sdst = R[0]; I.src = set().union(*R[1:]); I.kind = 'valu_rl'
        elif base.startswith('v_permlane') and 'swap' in base:
            I.dst = R[0] | R[1]; I.src = R[0] | R[1]; I.perm = True
        elif base in ('v_add_co_u32', 'v_sub_co_u32', 'v_addc_co_u32', 'v_subb_co_u32', 'v_subrev_co_u32'):
            I.dst = R[0]; I.sdst = R[1]; I.src = set().union(*R[2:])
        elif base in ('v_mad_u64_u32',):
            I.dst = R[0]; I.sdst = R[1]; I.src = set().union(*R[2:])
        else:
            I.dst = R[0]; I.src = set().union(*R[1:]) if len(R) > 1 else set()
            if base in ('v_fmac_f32', 'v_dot2c_f32_bf16', 'v_pk_fmac_f16', 'v_writelane_b32') or 'UNUSED_PRESERVE' in mods:
                I.src |= R[0]
            if base == 'v_cndmask_b32' and len(ops) == 3: I.src |= {('s', 'vcc')}
        return I
    if op.startswith('ds_'):
        I.kind = 'ds'
        if op.startswith('ds_read') or op.startswith('ds_bpermute') or op.startswith('ds_permute') or op.startswith('ds_swizzle') or ('rtn' in op):
            I.dst = R[0]; I.src = set().union(*R[1:])
        else:
            I.src = set().union(*R)
        return I
    if op.startswith('buffer_') or op.startswith('global_'):
        I.kind = 'vmem'
        mm = mods.split()
        is_lds = ('lds' in mm) or ('load_lds' in op)
        I.lds_dma = is_lds
        if op in ('buffer_wbl2', 'buffer_inv'): return I
        if 'load' in op and not is_lds:
            I.dst = R[0]; I.src = set().union(*R[1:])
        elif 'atomic' in op and 'sc0' in mm:
            I.dst = R[0] if op.startswith('buffer') else R[0]; I.src = set().union(*R)
        else:
            I.src = set().union(*R)
            if 'store' in op and ('x4' in op or 'x3' in op):
                I.wide_store_data = R[0] if op.startswith('buffer') else R[1]
        return I
    if op.startswith('s_'):
        I.kind = 'salu'
        if op.startswith('s_cmp') or op in ('s_waitcnt', 's_barrier', 's_sleep', 's_setprio', 's_sethalt'):
            I.src = set().union(*R) if R else set()
        elif op.startswith('s_load') or op.startswith('s_buffer_load') or op in ('s_memtime', 's_memrealtime'):
            I.dst = R[0]; I.src = set().union(*R[1:]) if len(R) > 1 else set(); I.kind = 'smem'
        else:
            I.dst = R[0] if R else set(); I.src = set().union(*R[1:]) if len(R) > 1 else set()
            if 'saveexec' in op: I.dst |= {('s', 'exec')}
        return I
    return I

def isv(rs): return {r for r in rs if r[0] in 'va'}
def iss(rs): return {r for r in rs if r[0] == 's'}

def need(P, C):
    n = 0
    Pv = isv(P.dst)
    valuP = P.kind in ('valu', 'valu_rl')
    valuC = C.kind in ('valu', 'valu_rl')
    if valuP and Pv:
        if C.kind == 'mfma' and Pv & C.src: n = max(n, 2)
        if C.kind == 'valu_rl' and Pv & C.src: n = max(n, 1)
        if valuC and C.dpp and Pv & C.src: n = max(n, 2)
        if valuC and C.perm and Pv & C.src: n = max(n, 2)
        if P.trans and valuC and not C.trans and Pv & C.src: n = max(n, 1)
        if P.trans and C.kind in ('mfma',) and Pv & C.src: n = max(n, 2)
        if ('op_sel' in P.mods and not P.op.startswith('v_pk_')) or 'sdwa' in P.op:
            if valuC and Pv & (C.src | C.dst): n = max(n, 1)
    if valuP and P.sdst:
        S = P.sdst
        if valuC and S & C.src:
            if C.op.startswith('v_readlane') or C.op.startswith('v_writelane'): n = max(n, 4)
            else: n = max(n, 2)
        if C.kind == 'vmem' and S & C.src: n = max(n, 5)
        if C.kind in ('salu', 'smem', 'branch') and S & C.src: n = max(n, 1)
    if P.kind == 'mfma':
        D = P.dst
        big = 12 if P.passes == 8 else 8
        if C.kind == 'mfma':
            if D & (C.A | C.B): n = max(n, big)
            if D & C.C:
                if not (C.C == D and C.passes == P.passes): n = max(n, big - 2)
            if D & C.dst and not (D & C.C):
                n = max(n, big)
        elif valuC and D & (C.src | C.dst): n = max(n, big)
        elif C.kind in ('ds', 'vmem') and D & (C.src | C.dst): n = max(n, big)
        if valuC and isv(P.C) & isv(C.dst) and not (D & C.dst): n = max(n, 7 if P.passes == 8 else 3)
    if P.wide_store_data and valuC and P.wide_store_data & C.dst: n = max(n, 2)
    if P.wide_store_data and C.kind in ('ds', 'vmem') and P.wide_store_data & C.dst: n = max(n, 1)
    if P.kind == 'salu' and ('s', 'm0') in P.dst and C.kind == 'vmem' and C.lds_dma: n = max(n, 1)
    return n

def fix_hazards(lines, report=None):
    MAXW = 14
    ins = [parse(l) for l in lines]
    n = len(ins)
    labels = {I.label: i for i, I in enumerate(ins) if I.label}
    preds = [[] for _ in range(n)]
    for i, I in enumerate(ins):
        if I.kind == 'end': continue
        if I.kind == 'branch':
            if I.target in labels: preds[labels[I.target]].append(i)
            if I.op == 's_branch': continue
        if i + 1 < n: preds[i + 1].append(i)
    extra = [0] * n
    changed = True
    while changed:
        changed = False
        for i, C in enumerate(ins):
            if C.kind in ('label', 'dir', 'other', 'end'): continue
            worst = 0
            stack = [(p, extra[i]) for p in preds[i]]
            seen = {}
            while stack:
                j, dist = stack.pop()
                if dist >= MAXW: continue
                if seen.get(j, 99) <= dist: continue
                seen[j] = dist
                P = ins[j]
                if P.kind not in ('label', 'dir', 'other'):
                    r = need(P, C)
                    if r > dist: worst = max(worst, r - dist)
                nd = dist + P.states + extra[j]
                for p in preds[j]: stack.append((p, nd))
            if worst > 0:
                extra[i] += worst; changed = True
                if report is not None: report.append((i, C.text, worst))
    out = []; cnt = 0
    for i, I in enumerate(ins):
        e = extra[i]
        while e > 0:
            k = min(e, 16); out.append(f"s_nop {k - 1}"); e -= k; cnt += 1
        out.append(I.text)
    return out, cnt
```

```python
from asmlib import *
KA = dict(u=0, Are=8, Aim=16, Bre=24, Bim=32, Cre=40, Cim=48, ldt=56, Dsk=64, Bx=72, wg=80, wu=88, wd=96, gw=104, out=112, dbg=120, ws=128)
L, D, F, N = 2048, 640, 1536, 192
WS_H   = 0x0;       SZ_H   = 128 * 48 * 1024
WS_W2  = 0x600000;  SZ_W2  = 8 * 48 * 5 * 1024
WS_UT  = 0x7E0000;  SZ_UT  = 640 * 4096
WS_KV  = 0xA60000;  KV_ROW = 4224; KV_CH = 2 * KV_ROW; SZ_KV = 640 * KV_CH
WS_G   = 0xF88000;  SZ_G   = 8192
WS_T1  = 0xF90000;  SZ_T1  = 640 * 4096
SRD3 = 0x00020000

def srd(a, base, lo, hi, size, add=0):
    if add:
        a(f"s_add_u32 s{base}, s{lo}, {hex(add)}")
        a(f"s_addc_u32 s{base+1}, s{hi}, 0")
    else:
        if base != lo: a(f"s_mov_b32 s{base}, s{lo}")
        if base + 1 != hi: a(f"s_mov_b32 s{base+1}, s{hi}")
    a(f"s_mov_b32 s{base+2}, {hex(size)}")
    a(f"s_mov_b32 s{base+3}, {hex(SRD3)}")

def kd(name, vgpr=256, sgpr=96):
    return f""".section .rodata,"a"
.p2align 6
.amdhsa_kernel {name}
  .amdhsa_next_free_vgpr {vgpr}
  .amdhsa_next_free_sgpr {sgpr}
  .amdhsa_accum_offset {min(256, (vgpr + 3) // 4 * 4)}
  .amdhsa_group_segment_fixed_size 0
  .amdhsa_kernarg_size 136
  .amdhsa_user_sgpr_count 2
  .amdhsa_user_sgpr_kernarg_segment_ptr 1
  .amdhsa_system_sgpr_workgroup_id_x 1
.end_amdhsa_kernel
.text
"""
def head(name):
    return f""".globl {name}
.p2align 8
.type {name},@function
{name}:
"""

STAMP_BASE = 64
class Stamps:
    def __init__(self, a, on): self.a = a; self.on = on; self.n = 0
    def real(self):
        if not self.on: return
        self.a(f"s_memrealtime s[{STAMP_BASE+2*self.n}:{STAMP_BASE+2*self.n+1}]"); self.n += 1
    def stamp(self):
        if not self.on: return
        self.a(f"s_memtime s[{STAMP_BASE+2*self.n}:{STAMP_BASE+2*self.n+1}]"); self.n += 1
    def flush(self, slot_sreg, vt=250):
        if not self.on: return
        a = self.a
        a("s_waitcnt vmcnt(0) lgkmcnt(0)")
        a(f"s_load_dwordx2 s[96:97], s[0:1], {KA['ws']}")
        a("s_waitcnt lgkmcnt(0)")
        a("s_add_u32 s96, s96, 0x8000000")
        a("s_addc_u32 s97, s97, 0")
        a(f"s_lshl_b32 s98, s{slot_sreg}, 6")
        a(f"v_mov_b32 v{vt}, s98")
        for k in range(self.n):
            a(f"v_mov_b32 v{vt+1}, s{STAMP_BASE+2*k}")
            a(f"global_store_dword v{vt}, v{vt+1}, s[96:97] offset:{4*k}")
        a("s_waitcnt vmcnt(0)")
```

```python
from common import *
CV_STRIDE = 13056
CV_U = 8448
def conv(a, sm='sc1', st=None):
    st = st or Stamps(a, False)
    A0 = 64
    ACC = 192
    B0 = 224
    a(f"s_load_dwordx2 s[32:33], s[0:1], {KA['ws']}")
    a(f"s_load_dwordx2 s[28:29], s[0:1], {KA['Dsk']}")
    a(f"s_mul_i32 s43, s4, {CV_STRIDE}")
    a("v_lshlrev_b32 v2, 4, v1")
    a("s_mov_b32 s44, 31776")
    for i in range(9):
        a(f"v_add_u32 v3, {1024*i}, v2")
        a("v_mul_u32_u24 v4, s44, v3")
        a("v_lshrrev_b32 v4, 26, v4")
        a("v_mul_u32_u24 v5, 2112, v4")
        a("v_sub_u32 v3, v3, v5")
        a("v_and_b32 v5, 1, v4")
        a(f"v_mul_u32_u24 v5, {KV_ROW}, v5")
        a("v_lshrrev_b32 v4, 1, v4")
        a("v_lshlrev_b32 v4, 2, v4")
        a("v_add_u32 v3, v3, v5")
        a("v_sub_u32 v3, v3, v4")
        a(f"v_add_u32 v{8+i}, 32, v3")
    for r in range(4): a(f"v_mov_b32 v{20+r}, 0")
    a(f"v_add_u32 v3, s43, v2")
    a("s_mov_b64 exec, 0x3fffffff")
    a.lds(f"ds_write_b128 v3, v[20:23] offset:{CV_U}", 'z')
    a("s_mov_b64 exec, -1")
    a("s_waitcnt lgkmcnt(0)"); a.lg = []
    srd(a, 8, 32, 33, SZ_KV, WS_KV)
    srd(a, 12, 32, 33, SZ_UT, WS_UT)
    srd(a, 16, 32, 33, SZ_G, WS_G)
    srd(a, 36, 32, 33, SZ_T1, WS_T1)
    a(f"s_mul_i32 s45, s40, {KV_CH}")
    a("s_lshl_b32 s46, s40, 12")
    def dmaK(ph):
        if ph: a("s_add_u32 s45, s45, 2048")
        for i in range(9):
            a(f"s_add_u32 m0, s43, {1024*i}")
            if i == 8: a("s_mov_b64 exec, 0xffff")
            else: a("s_nop 0")
            a.vmem(f"buffer_load_dwordx4 v{8+i}, s[8:11], s45 offen lds", ('k', ph))
        a("s_mov_b64 exec, -1")
    dmaK(0)
    for i in range(4):
        a(f"s_add_u32 m0, s43, {CV_U + 480 + 1024*i}")
        a(f"s_add_u32 s47, s46, {1024*i}")
        a.vmem("buffer_load_dwordx4 v2, s[12:15], s47 offen lds", 'u')
    a("s_lshl_b32 s47, s40, 1")
    a("v_mov_b32 v3, s47")
    a.vmem("global_load_ushort v24, v3, s[28:29]", 'dsk')
    a("v_bfe_u32 v3, v1, 2, 2")
    a("v_mul_u32_u24 v3, 2112, v3")
    a("v_lshrrev_b32 v4, 4, v1")
    a("v_lshlrev_b32 v5, 4, v4")
    a("v_sub_u32 v3, v3, v5")
    a("v_and_b32 v5, 3, v1")
    a("v_lshl_add_u32 v3, v5, 3, v3")
    a("v_add_u32 v3, 56, v3")
    a("v_add_u32 v6, s43, v3")
    a("v_and_b32 v3, 15, v1")
    a("v_lshlrev_b32 v3, 5, v3")
    a("v_lshl_add_u32 v3, v4, 4, v3")
    a(f"v_add_u32 v3, {CV_U}, v3")
    a("v_add_u32 v7, s43, v3")
    for r in range(32): a(f"v_mov_b32 v{ACC+r}, 0")
    def loadA(bp):
        for half in range(2):
            a.lds(f"ds_read_b64_tr_b16 {v(A0+4*bp+2*half,2)}, v6 offset:{64*bp + 8*(1-half)}", ('A', bp))
    def loadB(z, slot):
        a.lds(f"ds_read_b128 {v(B0+4*slot,4)}, v7 offset:{448 - 64*z}", ('B', z))
    a.wait_vm(('k', 0), 'u')
    st.stamp()
    for bp in range(32): loadA(bp)
    a.wait_lg_all()
    dmaK(1)
    st.stamp()
    def phase(ph):
        zs = list(range(7, -57 if ph == 0 else -25, -1))
        for n in range(3): loadB(zs[n], n % 4)
        for n, z in enumerate(zs):
            if n + 3 < len(zs): loadB(zs[n + 3], (n + 3) % 4)
            a.wait_lg(('B', z))
            for c in range(8):
                beta = z + 8 * c
                if beta > 8 * c + 7: continue
                if not (32 * ph <= beta < 32 * ph + 32): continue
                bp = beta - 32 * ph
                a.wait_lg(('A', bp))
                a(f"v_mfma_f32_16x16x32_bf16 {v(ACC+4*c,4)}, {v(A0+4*bp,4)}, {v(B0+4*(n%4),4)}, {v(ACC+4*c,4)}")
            if ph == 0:
                bp = z + 56
                if 0 <= bp < 32:
                    if bp == 31: a.wait_vm(('k', 1))
                    loadA(bp)
    phase(0)
    st.stamp()
    phase(1)
    st.stamp()
    a.wait_vm('dsk')
    a("v_lshlrev_b32 v24, 16, v24")
    a("v_and_b32 v3, 15, v1")
    a("v_lshlrev_b32 v3, 4, v3")
    a("v_lshrrev_b32 v4, 4, v1")
    a("v_lshl_add_u32 v3, v4, 2, v3")
    a("v_lshlrev_b32 v4, 2, v3")
    a("v_lshlrev_b32 v5, 1, v3")
    a(f"v_add_u32 v25, {CV_U + 480}, v5")
    a("v_add_u32 v25, s43, v25")
    G0 = 64; U0 = 128
    for c in range(8):
        a(f"s_mov_b32 s47, {1024*c}")
        a.vmem(f"buffer_load_dwordx4 {v(G0+4*c,4)}, v4, s[16:19], s47 offen", ('g', c))
        a.lds(f"ds_read_b64 {v(U0+2*c,2)}, v25 offset:{512*c}", ('uu', c))
    a("s_mov_b32 s48, 0xffff0000")
    for c in range(8):
        a.wait_vm(('g', c)); a.wait_lg(('uu', c))
        T = 26 + 16 * (c % 2); y = ACC + 4 * c; u0 = U0 + 2 * c; g0 = G0 + 4 * c
        a(f"v_lshlrev_b32 v{T}, 16, v{u0}")
        a(f"v_and_b32 v{T+1}, s48, v{u0}")
        a(f"v_lshlrev_b32 v{T+2}, 16, v{u0+1}")
        a(f"v_and_b32 v{T+3}, s48, v{u0+1}")
        for r in range(4): a(f"v_mul_f32 v{T+r}, v24, v{T+r}")
        a(f"v_cvt_pk_bf16_f32 v{T+4}, v{T}, v{T+1}")
        a(f"v_cvt_pk_bf16_f32 v{T+5}, v{T+2}, v{T+3}")
        a(f"v_cvt_pk_bf16_f32 v{T+6}, v{y}, v{y+1}")
        a(f"v_cvt_pk_bf16_f32 v{T+7}, v{y+2}, v{y+3}")
        for h in range(2):
            a(f"v_lshlrev_b32 v{T+8}, 16, v{T+4+h}")
            a(f"v_and_b32 v{T+9}, s48, v{T+4+h}")
            a(f"v_lshlrev_b32 v{T+10}, 16, v{T+6+h}")
            a(f"v_and_b32 v{T+11}, s48, v{T+6+h}")
            a(f"v_add_f32 v{T+8}, v{T+8}, v{T+10}")
            a(f"v_add_f32 v{T+9}, v{T+9}, v{T+11}")
            a(f"v_cvt_pk_bf16_f32 v{T+8}, v{T+8}, v{T+9}")
            a(f"v_and_b32 v{T+9}, s48, v{T+8}")
            a(f"v_lshlrev_b32 v{T+8}, 16, v{T+8}")
            a(f"v_mul_f32 v{T+8}, v{g0+2*h}, v{T+8}")
            a(f"v_mul_f32 v{T+9}, v{g0+2*h+1}, v{T+9}")
            a(f"v_cvt_pk_bf16_f32 v{T+12+h}, v{T+8}, v{T+9}")
        a(f"s_add_u32 s47, s46, {512*c}")
        a.vmem(f"buffer_store_dwordx2 {v(T+12,2)}, v5, s[36:39], s47 offen {sm}", 'st')
```

```python
from common import *
def ffn1(a, store_mods='sc1', prio=None, st=None, prefetch=False, fine=False):
    st = st or Stamps(a, False)
    LANE = 1
    VX = 2; VW = 4; BA = 7; BB = 10; VH = 14
    AS = [16, 36]; BS = [28, 48]
    T = 56
    ACC = 96
    WS0 = 0; XS0 = 49152
    acc = lambda m, cb: ACC + 16 * (2 * m + cb)
    a(f"s_load_dwordx2 s[8:9], s[0:1], {KA['u']}")
    a(f"s_load_dwordx4 s[20:23], s[0:1], {KA['wg']}")
    a(f"s_load_dwordx2 s[16:17], s[0:1], {KA['ws']}")
    a(f"v_and_b32 v{LANE}, 63, v0")
    for e in range(2):
        a(f"v_lshrrev_b32 v{T}, 3, v{LANE}")
        if e: a(f"v_add_u32 v{T}, 8, v{T}")
        a(f"v_lshrrev_b32 v{T+1}, 1, v{T}")
        a(f"v_and_b32 v{T+1}, 7, v{T+1}")
        a(f"v_and_b32 v{T+2}, 7, v{LANE}")
        a(f"v_xor_b32 v{T+1}, v{T+1}, v{T+2}")
        a(f"v_lshlrev_b32 v{T+1}, 4, v{T+1}")
        a(f"v_mul_u32_u24 v{T}, 1280, v{T}")
        a(f"v_add_u32 v{VX+e}, v{T}, v{T+1}")
    a("s_lshl_b32 s24, s40, 7")
    a("s_lshl_b32 s25, s4, 5")
    a("s_add_u32 s24, s24, s25")
    a("s_mul_i32 s24, s24, 1280")
    for e in range(2): a(f"v_add_u32 v{VX+e}, s24, v{VX+e}")
    a("s_lshr_b32 s26, s4, 1")
    a("s_and_b32 s27, s4, 1")
    a("s_mul_i32 s28, s27, 192")
    a("s_lshl_b32 s29, s26, 1")
    a("s_mul_i32 s30, s41, 192")
    a("s_mov_b32 s31, 43691")
    for ii in range(3):
        a(f"v_add_u32 v{T}, s28, v{LANE}")
        if ii: a(f"v_add_u32 v{T}, {64*ii}, v{T}")
        a(f"v_mul_u32_u24 v{T+1}, s31, v{T}")
        a(f"v_lshrrev_b32 v{T+1}, 19, v{T+1}")
        a(f"v_mul_u32_u24 v{T+2}, 12, v{T+1}")
        a(f"v_sub_u32 v{T+2}, v{T}, v{T+2}")
        a(f"v_xor_b32 v{T+2}, s29, v{T+2}")
        a(f"v_lshlrev_b32 v{T+2}, 4, v{T+2}")
        a(f"v_mul_u32_u24 v{T+1}, 3072, v{T+1}")
        a(f"v_add3_u32 v{VW+ii}, v{T+1}, v{T+2}, s30")
    a(f"v_lshrrev_b32 v{T}, 4, v{LANE}")
    a(f"v_and_b32 v{T+1}, 1, v{T}")
    a(f"v_lshrrev_b32 v{T+2}, 1, v{T}")
    a(f"v_bfe_u32 v{T+3}, v{LANE}, 2, 2")
    a(f"v_lshl_add_u32 v{T+2}, v{T+2}, 3, v{T+3}")
    a(f"v_mul_u32_u24 v{T+2}, 192, v{T+2}")
    a(f"v_mul_u32_u24 v{T+3}, 6144, v{T+1}")
    a(f"v_add_u32 v{T+2}, v{T+2}, v{T+3}")
    a(f"v_and_b32 v{T+3}, 1, v{LANE}")
    a(f"v_lshl_add_u32 v{T+2}, v{T+3}, 3, v{T+2}")
    a(f"v_bfe_u32 v{T+3}, v{LANE}, 1, 1")
    a(f"v_lshlrev_b32 v{T+1}, 1, v{T+1}")
    a("s_mul_i32 s32, s26, 6")
    for m in range(3):
        a(f"v_add_u32 v{T+4}, s32, v{T+3}")
        if m: a(f"v_add_u32 v{T+4}, {2*m}, v{T+4}")
        a(f"v_xor_b32 v{T+4}, v{T+4}, v{T+1}")
        a(f"v_lshl_add_u32 v{BA+m}, v{T+4}, 4, v{T+2}")
    a(f"v_and_b32 v{T}, 31, v{LANE}")
    a("s_lshl_b32 s33, s27, 6")
    a(f"v_add_u32 v{T}, s33, v{T}")
    a(f"v_bfe_u32 v{T+1}, v{T}, 1, 3")
    a(f"v_lshrrev_b32 v{T+2}, 5, v{LANE}")
    a(f"v_lshlrev_b32 v{T}, 7, v{T}")
    a(f"v_add_u32 v{T}, {XS0}, v{T}")
    for s_ in range(4):
        a(f"v_add_u32 v{T+3}, {2*s_}, v{T+2}")
        a(f"v_xor_b32 v{T+3}, v{T+3}, v{T+1}")
        a(f"v_lshl_add_u32 v{BB+s_}, v{T+3}, 4, v{T}")
    a(f"v_bfe_u32 v{T}, v{LANE}, 4, 1")
    a(f"v_mul_u32_u24 v{T}, {48*1024}, v{T}")
    a(f"v_lshlrev_b32 v{T+1}, 8, v{T+2}")
    a(f"v_and_b32 v{T+3}, 15, v{LANE}")
    a(f"v_lshlrev_b32 v{T+3}, 4, v{T+3}")
    a(f"v_add3_u32 v{VH}, v{T}, v{T+1}, v{T+3}")
    a("s_mul_i32 s34, s26, 6144")
    a("s_mul_i32 s35, s27, 3072")
    a("s_add_u32 s34, s34, s35")
    a("s_lshl_b32 s35, s4, 12")
    a(f"s_add_u32 s35, s35, {XS0}")
    a("s_waitcnt lgkmcnt(0)")
    srd(a, 8, 8, 9, 2048 * 1280)
    a("s_cmp_eq_u32 s26, 0")
    a("s_cselect_b32 s12, s20, s22")
    a("s_cselect_b32 s13, s21, s23")
    a(f"s_mov_b32 s14, {640*3072}")
    a(f"s_mov_b32 s15, {hex(SRD3)}")
    srd(a, 16, 16, 17, SZ_H, WS_H)
    if prio is not None: a(f"s_setprio {prio}")

    def dmaW(j, ii):
        if ii == 0: a(f"s_mov_b32 s36, {98304*j}")
        a(f"s_add_u32 m0, s34, {(j % 4) * 12288 + 1024 * ii}")
        a.vmem(f"buffer_load_dwordx4 v{VW+ii}, s[12:15], s36 offen lds", ('W', j))
    def dmaX(i, ii):
        if ii % 2 == 0: a(f"s_mov_b32 s37, {128*i + 20480*(ii >> 1)}")
        a(f"s_add_u32 m0, s35, {(i % 2) * 16384 + 1024 * ii}")
        a.vmem(f"buffer_load_dwordx4 v{VX+(ii & 1)}, s[8:11], s37 offen lds", ('X', i))
    def reads(j, ks, st):
        R = []
        i = j // 2; sx = (j % 2) * 2 + ks
        def rA(m, h):
            return lambda: a.lds(f"ds_read_b64_tr_b16 {v(AS[st]+4*m+2*h, 2)}, v{BA+m} offset:{(j % 4)*12288 + 192*(16*ks + 4*h)}", ('A', st, m))
        def rB(cb):
            return lambda: a.lds(f"ds_read_b128 {v(BS[st]+4*cb, 4)}, v{BB+sx} offset:{(i % 2)*16384 + 4096*cb}", ('B', st, cb))
        return [rA(0, 0), rA(0, 1), rB(0), rB(1), rA(1, 0), rA(1, 1), rA(2, 0), rA(2, 1)]
    def mfmas(st, fill):
        k = 0
        for m in range(3):
            for cb in range(2):
                a.wait_lg(('A', st, m), ('B', st, cb))
                a(f"v_mfma_f32_32x32x16_bf16 {v(acc(m,cb),16)}, {v(AS[st]+4*m,4)}, {v(BS[st]+4*cb,4)}, {v(acc(m,cb),16)}")
                for f_ in fill[k]: f_()
                k += 1
    for ii in range(4): dmaX(0, ii)
    for ii in range(3): dmaW(0, ii)
    for ii in range(3): dmaW(1, ii)
    for ii in range(4): dmaX(1, ii)
    for ii in range(3): dmaW(2, ii)
    for ii in range(3): dmaW(3, ii)
    if prefetch:
        G = prefetch; per = 128 // G
        P = T
        a("s_lshl_b32 s48, s6, 1")
        a("s_add_u32 s48, s48, s27")
        a("s_mul_i32 s48, s48, 30720")
        a("s_and_b32 s49, s5, 3")
        a("s_mul_i32 s49, s49, 768")
        a("s_add_u32 s48, s48, s49")
        a("s_mov_b32 s49, 43691")
        a(f"v_mul_u32_u24 v{P}, s49, v{LANE}")
        a(f"v_lshrrev_b32 v{P}, 18, v{P}")
        a(f"v_mul_u32_u24 v{P+1}, 6, v{P}")
        a(f"v_sub_u32 v{P+1}, v{LANE}, v{P+1}")
        a(f"v_mul_u32_u24 v{P}, 3072, v{P}")
        a(f"v_lshl_add_u32 v{P}, v{P+1}, 7, v{P}")
        for q in range(per):
            a.vmem(f"buffer_load_dword v{P+2}, v{P}, s[12:15], s48 offen offset:{G*q}", 'pf')
        a("s_lshl_b32 s48, s6, 2")
        a("s_add_u32 s48, s48, s4")
        a(f"v_lshlrev_b32 v{P+3}, 7, v{LANE}")
        for rnd in range(2):
            if rnd:
                a("s_add_u32 s48, s48, 128")
                a("s_cmp_ge_u32 s48, 160")
                a("s_cselect_b32 s48, 159, s48")
            a("s_lshl_b32 s49, s48, 13")
            a("s_lshr_b32 s51, s5, 2")
            a(f"s_mul_i32 s51, s51, {1024*1280}")
            a("s_add_u32 s50, s49, s51")
            for q in range(per):
                a.vmem(f"buffer_load_dword v{P+4+rnd}, v{P+3}, s[8:11], s50 offen offset:{G*q}", 'pf')
    for r in range(96): a(f"v_mov_b32 v{ACC+r}, 0")
    a.wait_vm(('X', 0), ('W', 0))
    st.stamp()
    a("s_barrier")
    for f_ in reads(0, 0, 0): f_()
    NS = 20
    def spread(items, nslots=6, first=0):
        out = [[] for _ in range(nslots)]
        n = len(items)
        for q, it in enumerate(items):
            out[min(nslots - 1, first + q * (nslots - first) // max(n, 1))].append(it)
        return out
    for j in range(NS):
        R = reads(j, 1, 1)
        fill = [R[0:2], R[2:4], R[4:6], R[6:8], [], []]
        mfmas(0, fill)
        a.wait_lg_all()
        if fine is True and j % 2 == 1: st.stamp()
        wat = isinstance(fine, tuple) and j in fine
        if wat: st.stamp()
        if j + 1 < NS:
            tags = [('W', j + 1)]
            if j % 2 == 1: tags.append(('X', (j + 1) // 2))
            a.wait_vm(*tags)
            if wat: st.stamp(); a("s_waitcnt lgkmcnt(0)")
            a("s_barrier")
            if wat: st.stamp(); a("s_waitcnt lgkmcnt(0)")
            dm = []
            if j % 2 == 1 and (j + 1) // 2 + 1 < 10:
                dm += [(lambda i=(j + 1) // 2 + 1, ii=ii: dmaX(i, ii)) for ii in range(4)]
            if j + 4 < NS:
                dm += [(lambda jj=j + 4, ii=ii: dmaW(jj, ii)) for ii in range(3)]
            R = reads(j + 1, 0, 0)
            fill = [R[0:2], R[2:4], R[4:6], R[6:8], [], []]
            dsp = spread(dm, 6)
            fill = [dsp[q] + fill[q] if q < 2 else fill[q] + dsp[q] for q in range(6)]
            mfmas(1, fill)
        else:
            mfmas(1, [[] for _ in range(6)])
    if not isinstance(fine, tuple): st.stamp()
    a("s_mov_b32 s38, 0xbfb8aa3b")
    a("s_mov_b32 s39, 0xbfb8aa3b")
    a("s_mul_i32 s42, s41, 6")
    a("s_mul_i32 s43, s26, 3")
    a("s_add_u32 s42, s42, s43")
    a("s_lshl_b32 s43, s40, 3")
    a("s_lshl_b32 s44, s27, 2")
    a("s_add_u32 s43, s43, s44")
    for m in range(3):
        a(f"s_add_u32 s44, s42, {m}")
        a("s_lshr_b32 s45, s44, 1")
        a("s_and_b32 s44, s44, 1")
        a("s_lshl_b32 s44, s44, 9")
        for cb in range(2):
            g = acc(m, cb); u = g + 8
            O = T + 16 + 4 * ((2 * m + cb) % 2)
            for p in range(4):
                t0 = T + 4 * (p % 2) ;
                a(f"v_pk_mul_f32 {v(t0,2)}, {v(g+2*p,2)}, s[38:39]")
                a(f"v_exp_f32 v{t0}, v{t0}")
                a(f"v_exp_f32 v{t0+1}, v{t0+1}")
                a(f"v_pk_mul_f32 {v(t0+2,2)}, {v(g+2*p,2)}, {v(u+2*p,2)}")
                a(f"v_pk_add_f32 {v(t0,2)}, {v(t0,2)}, 1.0 op_sel_hi:[1,0]")
                a(f"v_rcp_f32 v{t0}, v{t0}")
                a(f"v_rcp_f32 v{t0+1}, v{t0+1}")
                a(f"s_nop 0")
                a(f"v_pk_mul_f32 {v(t0+2,2)}, {v(t0+2,2)}, {v(t0,2)}")
                a(f"v_cvt_pk_bf16_f32 v{O+p}, v{t0+2}, v{t0+3}")
            a(f"s_add_u32 s46, s43, {2*cb}")
            a("s_mul_i32 s46, s46, 48")
            a("s_add_u32 s46, s46, s45")
            a("s_lshl_b32 s46, s46, 10")
            a("s_add_u32 s46, s46, s44")
            a.vmem(f"buffer_store_dwordx4 {v(O,4)}, v{VH}, s[16:19], s46 offen {store_mods}", 'st')
    if not fine: st.stamp()
    a("s_waitcnt vmcnt(0)") if st.on else None
    if not fine: st.stamp()
    st.real()
    if st.on:
        a("s_lshl_b32 s47, s2, 2")
        a("s_add_u32 s47, s47, s4")
    st.flush(47)
    a("s_endpgm")
```

```python
from common import *
def ffn2(a, st=None, wait_flags=None, nslot=4):
    st = st or Stamps(a, False)
    SLOT = 20480
    FA = 16
    FB = 56
    ACC = 104
    NB = 3
    a(f"s_load_dwordx2 s[32:33], s[0:1], {KA['ws']}")
    a(f"s_load_dwordx2 s[34:35], s[0:1], {KA['out']}")
    a("v_lshlrev_b32 v2, 4, v1")
    a("s_and_b32 s26, s4, 1")
    a("s_lshr_b32 s27, s4, 1")
    a(f"s_mul_i32 s28, s41, {48*5*1024}")
    a("s_mul_i32 s29, s4, 5120")
    a("s_add_u32 s28, s28, s29")
    a("s_lshl_b32 s30, s40, 2")
    a("s_lshl_b32 s31, s26, 1")
    a("s_add_u32 s30, s30, s31")
    a("s_mul_i32 s30, s30, 48")
    a("s_lshl_b32 s31, s27, 1")
    a("s_add_u32 s30, s30, s31")
    a("s_lshl_b32 s30, s30, 10")
    a("s_mul_i32 s31, s27, 10240")
    a("v_add_u32 v3, s31, v2")
    a(f"v_add_u32 v15, {2*SLOT}, v3")
    a("s_waitcnt lgkmcnt(0)")
    srd(a, 8, 32, 33, SZ_W2, WS_W2)
    srd(a, 12, 32, 33, SZ_H, WS_H)
    def dmaA(s_):
        for i in range(5):
            a(f"s_add_u32 m0, s29, {(s_ % nslot) * SLOT + 1024*i}")
            a(f"s_add_u32 s36, s28, {s_*20480 + 1024*i}")
            a.vmem("buffer_load_dwordx4 v2, s[8:11], s36 offen lds", ('A', s_))
    def ldB(s_):
        for e in range(2):
            for cb in range(2):
                a(f"s_add_u32 s37, s30, {(cb*48 + 4*s_ + e)*1024}")
                a.vmem(f"buffer_load_dwordx4 {v(FB + 16*(s_ % NB) + 8*e + 4*cb, 4)}, v2, s[12:15], s37 offen", ('B', s_))
    NS = 12
    for s_ in range(nslot):
        dmaA(s_)
        if s_ < NB - 1: ldB(s_)
    for r in range(40): a(f"v_mov_b32 v{ACC+r}, 0")
    def rdA(s_, e, st_):
        sl = s_ % nslot
        base, off = ('v3', sl * SLOT) if sl < 2 else ('v15', (sl - 2) * SLOT)
        return [(lambda i=i: a.lds(f"ds_read_b128 {v(FA+20*st_+4*i,4)}, {base} offset:{off + e*5120 + 1024*i}", ('a', st_, i))) for i in range(5)]
    def mf(s_, e, st_, fill):
        k = 0
        for i in range(5):
            for cb in range(2):
                a.wait_lg(('a', st_, i))
                acc = ACC + 4 * (5 * cb + i)
                a(f"v_mfma_f32_16x16x32_bf16 {v(acc,4)}, {v(FA+20*st_+4*i,4)}, {v(FB+16*(s_ % NB)+8*e+4*cb,4)}, {v(acc,4)}")
                for f_ in fill.get(k, []): f_()
                k += 1
    a.wait_vm(('A', 0), ('B', 0))
    st.stamp()
    a("s_barrier")
    for f_ in rdA(0, 0, 0): f_()
    for s_ in range(NS):
        R = rdA(s_, 1, 1)
        mf(s_, 0, 0, {0: R[0:1], 1: R[1:2], 2: R[2:3], 3: R[3:4], 4: R[4:5]})
        a.wait_lg_all()
        if s_ + 1 < NS:
            a.wait_vm(('A', s_ + 1))
            a("s_barrier")
            fill = {}
            R = rdA(s_ + 1, 0, 0)
            for i in range(5): fill.setdefault(i, []).append(R[i])
            def later(s2=s_):
                if s2 + nslot < NS: dmaA(s2 + nslot)
            fill.setdefault(5, []).append(later)
            a.wait_vm(('B', s_))
            mf(s_, 1, 1, fill)
            if s_ + NB - 1 < NS: ldB(s_ + NB - 1)
            a.wait_vm(('B', s_ + 1))
        else:
            mf(s_, 1, 1, {})
    st.stamp()
    a("s_barrier")
    a("s_lshl_b32 s36, s4, 13")
    a("v_add_u32 v4, s36, v2")
    a("s_xor_b32 s37, s4, 2")
    a("s_lshl_b32 s37, s37, 13")
    a("v_add_u32 v5, s37, v2")
    a("s_cmp_eq_u32 s27, 0")
    a("s_cbranch_scc1 L_f2_k0")
    a("s_nop 7")
    for i in range(5): a(f"ds_write_b128 v4, {v(ACC+4*i,4)} offset:{1024*i}")
    for r in range(20): a(f"v_mov_b32 v{ACC+r}, v{ACC+20+r}")
    a("s_branch L_f2_join")
    a.label("L_f2_k0")
    a("s_nop 7")
    for i in range(5): a(f"ds_write_b128 v4, {v(ACC+20+4*i,4)} offset:{1024*i}")
    a.label("L_f2_join")
    a("s_waitcnt lgkmcnt(0)")
    a("s_barrier")
    RX = 16
    for i in range(5): a(f"ds_read_b128 {v(RX+4*i,4)}, v5 offset:{1024*i}")
    a("s_lshl_b32 s42, s40, 6")
    a("s_lshl_b32 s43, s26, 5")
    a("s_add_u32 s42, s42, s43")
    a("s_lshl_b32 s43, s27, 4")
    a("s_add_u32 s42, s42, s43")
    a("v_and_b32 v6, 15, v1")
    a("v_add_u32 v6, s42, v6")
    a("v_lshrrev_b32 v7, 4, v1")
    a("s_mul_i32 s43, s41, 80")
    a("v_lshlrev_b32 v8, 2, v7")
    a("v_add_u32 v8, s43, v8")
    a("v_lshlrev_b32 v9, 12, v8")
    a("v_lshl_add_u32 v9, v6, 1, v9")
    a("v_mul_u32_u24 v10, 1280, v6")
    a("v_lshl_add_u32 v10, v8, 1, v10")
    a("v_lshlrev_b32 v11, 2, v6")
    srd(a, 8, 32, 33, SZ_T1, WS_T1)
    srd(a, 16, 32, 33, SZ_G, WS_G)
    srd(a, 20, 34, 35, 2048 * 1280)
    if wait_flags: wait_flags(a)
    a.reset_counts()
    a.vmem("buffer_load_dword v12, v11, s[16:19], 0 offen", 'g')
    TL = 56
    ld_mod = 'sc1' if wait_flags else ''
    for i in range(5):
        a(f"s_mov_b32 s44, {16*4096*i}")
        for r in range(4):
            if r == 0: a.vmem(f"buffer_load_ushort v{TL+4*i+r}, v9, s[8:11], s44 offen {ld_mod}", ('t', i))
            else:
                a(f"s_add_u32 s44, s44, 4096")
                a.vmem(f"buffer_load_ushort v{TL+4*i+r}, v9, s[8:11], s44 offen {ld_mod}", ('t', i))
    a("s_waitcnt lgkmcnt(0)")
    for r in range(20): a(f"v_add_f32 v{ACC+r}, v{ACC+r}, v{RX+r}")
    a.wait_vm('g')
    a("v_sub_f32 v12, 1.0, v12")
    a("v_cvt_pk_bf16_f32 v12, v12, v12")
    a("v_lshlrev_b32 v12, 16, v12")
    a("s_mov_b32 s48, 0xffff0000")
    for i in range(5):
        a.wait_vm(('t', i))
        y = ACC + 4 * i; T = 80 + 8 * (i % 2); tl = TL + 4 * i
        a(f"v_cvt_pk_bf16_f32 v{T}, v{y}, v{y+1}")
        a(f"v_cvt_pk_bf16_f32 v{T+1}, v{y+2}, v{y+3}")
        for h in range(2):
            a(f"v_lshlrev_b32 v{T+2}, 16, v{T+h}")
            a(f"v_and_b32 v{T+3}, s48, v{T+h}")
            a(f"v_mul_f32 v{T+2}, v12, v{T+2}")
            a(f"v_mul_f32 v{T+3}, v12, v{T+3}")
            a(f"v_cvt_pk_bf16_f32 v{T+2}, v{T+2}, v{T+3}")
            a(f"v_and_b32 v{T+3}, s48, v{T+2}")
            a(f"v_lshlrev_b32 v{T+2}, 16, v{T+2}")
            a(f"v_lshlrev_b32 v{tl+2*h}, 16, v{tl+2*h}")
            a(f"v_lshlrev_b32 v{tl+2*h+1}, 16, v{tl+2*h+1}")
            a(f"v_add_f32 v{T+2}, v{T+2}, v{tl+2*h}")
            a(f"v_add_f32 v{T+3}, v{T+3}, v{tl+2*h+1}")
            a(f"v_cvt_pk_bf16_f32 v{T+4+h}, v{T+2}, v{T+3}")
        a.vmem(f"buffer_store_dwordx2 {v(T+4,2)}, v10, s[20:23], 0 offen offset:{32*i}", 'st')
```

```python
import sys, os
sys.path.insert(0, os.path.dirname(__file__))
from common import *
import k0, k12
NAME = 'gated_mix__ssm_conv_s4__swiglu_ffn__prompt'
def header(launches):
    ref = open('cdna_kernels/' + NAME + '.s.ref').read().split('\n')
    out = []
    for ln in ref:
        if ln.startswith('; Override launch') or ln.startswith('; grid=ceil') or ln.startswith('; @launch') : continue
        if not ln.startswith(';'): break
        out.append(ln)
    for k, g, b, lds in launches:
        out.append(f"; @launch kernel={k} grid=({g},1,1) block=({b},1,1) lds={lds}")
    out.append('.amdgcn_target "amdgcn-amd-amdhsa--gfx950"')
    out.append('.text')
    return '\n'.join(out) + '\n'
def relabel(lines, suf):
    return lines
def build3(diag=False):
    ks = []
    l0, _ = k0.kernel0('k0', diag=diag)
    l1, _ = k12.kernel_conv(diag=diag)
    l2, _ = k12.kernel_ffn2(diag=diag)
    ks = [('mix_a_kernel', l0, 512, 81920), ('mix_b_kernel', l1, 160, 53248), ('mix_c_kernel', l2, 256, 81920)]
    txt = header([(n, g, 256, lds) for n, l, g, lds in ks])
    for n, l, g, lds in ks:
        txt += head(n) + '\n'.join(l) + '\n' + kd(n, sgpr=100 if diag else 64)
    return txt, ks
if __name__ == '__main__':
    txt, ks = build3()
    out = sys.argv[1] if len(sys.argv) > 1 else 'cdna_kernels/' + NAME + '.s'
    open(out, 'w').write(txt)
    print('wrote', out, len(txt), 'bytes')
```

```python
from common import *
from ffn1 import ffn1
import side
def role_decode(a, nwg, only=None):
    a(f"s_cmp_ge_u32 s2, {nwg}")
    a("s_cbranch_scc1 L_exit0")
    a("v_lshrrev_b32 v1, 6, v0")
    a("s_nop 0")
    a("v_readfirstlane_b32 s4, v1")
def kernel0_ffn1_only(name, diag=False, **kw):
    a = Asm()
    st = Stamps(a, diag)
    st.real(); st.stamp()
    role_decode(a, 256)
    a("s_and_b32 s5, s2, 7")
    a("s_lshr_b32 s6, s2, 3")
    a("s_lshr_b32 s40, s5, 2")
    a("s_lshl_b32 s40, s40, 3")
    a("s_and_b32 s7, s6, 7")
    a("s_add_u32 s40, s40, s7")
    a("s_and_b32 s41, s5, 3")
    a("s_lshl_b32 s41, s41, 2")
    a("s_lshr_b32 s7, s6, 3")
    a("s_add_u32 s41, s41, s7")
    ffn1(a, st=st, **kw)
    a.label("L_exit0")
    a("s_endpgm")
    rep = []
    lines, n = fix_hazards(a.lines, rep)
    return lines, rep
def kernel0(name, diag=False, roles='both', prefetch=True, sm='sc1', prio=None, fine=False):
    a = Asm()
    st = Stamps(a, diag)
    role_decode(a, 512)
    st.real(); st.stamp()
    a("s_and_b32 s5, s2, 7")
    a("s_lshr_b32 s7, s2, 3")
    a("s_lshr_b32 s3, s7, 5")
    a("s_xor_b32 s6, s7, s3")
    a("s_and_b32 s34, s6, 1")
    a("s_and_b32 s6, s7, 31")
    a("s_lshr_b32 s6, s6, 1")
    a("s_lshl_b32 s3, s3, 4")
    a("s_or_b32 s6, s6, s3")
    a("s_cmp_eq_u32 s34, 1")
    a("s_cbranch_scc1 L_side")
    if roles in ('both', 'ffn1'):
        a("s_lshr_b32 s40, s5, 2")
        a("s_lshl_b32 s40, s40, 3")
        a("s_and_b32 s7, s6, 7")
        a("s_add_u32 s40, s40, s7")
        a("s_and_b32 s41, s5, 3")
        a("s_lshl_b32 s41, s41, 2")
        a("s_lshr_b32 s7, s6, 3")
        a("s_add_u32 s41, s41, s7")
        ffn1(a, st=st, store_mods=sm, prio=prio, fine=fine)
    a("s_endpgm")
    a.label("L_side")
    a.reset_counts()
    if roles in ('both', 'side'):
        st2 = Stamps(a, diag); st2.n = 2
        a("v_and_b32 v1, 63, v0")
        if prefetch: side.prefetch_ffn1(a)
        a.reset_counts()
        st2.stamp()
        if diag: a("s_mov_b32 s70, s68")
        a("s_cmp_ge_u32 s6, 20")
        a("s_cbranch_scc1 L_tasks")
        a("s_mul_i32 s40, s5, 20")
        a("s_add_u32 s40, s40, s6")
        a("s_lshl_b32 s40, s40, 2")
        a("s_add_u32 s40, s40, s4")
        side.kgen(a, sm=sm, st=st2)
        a("s_branch L_side_end")
        a.label("L_tasks"); a.reset_counts()
        a("s_sub_u32 s7, s6, 20")
        a("s_lshl_b32 s7, s7, 2")
        a("s_add_u32 s7, s7, s4")
        a("s_cmp_ge_u32 s7, 36")
        a("s_cbranch_scc1 L_t3")
        a("s_cmp_ge_u32 s7, 20")
        a("s_cbranch_scc1 L_t2")
        a("s_and_b32 s40, s5, 3")
        a("s_mul_i32 s40, s40, 20")
        a("s_add_u32 s7, s7, s40")
        a("s_mul_i32 s40, s7, 6554")
        a("s_lshr_b32 s40, s40, 16")
        a("s_mul_i32 s41, s40, 10")
        a("s_sub_u32 s41, s7, s41")
        a("s_lshr_b32 s3, s5, 2")
        a("s_lshl_b32 s3, s3, 3")
        a("s_add_u32 s40, s40, s3")
        side.t1(a, sm=sm)
        a("s_branch L_side_end")
        a.label("L_t2"); a.reset_counts()
        a("s_sub_u32 s7, s7, 20")
        a("s_lshl_b32 s40, s7, 4")
        a("s_lshl_b32 s3, s5, 8")
        a("s_add_u32 s40, s40, s3")
        side.t2(a, sm=sm)
        a("s_branch L_side_end")
        a.label("L_t3"); a.reset_counts()
        a("s_sub_u32 s7, s7, 36")
        a("s_mul_i32 s3, s5, 12")
        a("s_add_u32 s7, s7, s3")
        a("s_lshr_b32 s40, s7, 1")
        a("s_and_b32 s41, s7, 1")
        side.t3(a, sm=sm)
        a.label("L_side_end")
        if diag:
            st2.n = 4
            a("s_waitcnt vmcnt(0)")
            st2.stamp(); st2.real()
            a("s_lshl_b32 s47, s2, 2")
            a("s_add_u32 s47, s47, s4")
            st2.flush(47)
    a.label("L_exit0")
    a("s_endpgm")
    rep = []
    lines, n = fix_hazards(a.lines, rep)
    return lines, rep
if __name__ == '__main__':
    lines, rep = kernel0('k')
    print(len(lines), 'lines', len(rep), 'nops')
    for r in rep[:40]: print(r)
```

```python
from common import *
from conv import conv
from ffn2 import ffn2
def prologue(a, nwg, exitlab):
    a(f"s_cmp_ge_u32 s2, {nwg}")
    a(f"s_cbranch_scc1 {exitlab}")
    a("v_lshrrev_b32 v1, 6, v0")
    a("s_nop 0")
    a("v_readfirstlane_b32 s4, v1")
    a("v_and_b32 v1, 63, v0")
def flush(a, st):
    if st.on:
        a("s_waitcnt vmcnt(0)")
        st.stamp(); st.real()
        a("s_lshl_b32 s47, s2, 2")
        a("s_add_u32 s47, s47, s4")
        st.flush(47)
def kernel_conv(diag=False, sm='sc1'):
    a = Asm(); st = Stamps(a, diag)
    prologue(a, 160, "L_exit1")
    st.real(); st.stamp()
    a("s_lshl_b32 s40, s2, 2")
    a("s_add_u32 s40, s40, s4")
    conv(a, sm=sm, st=st)
    flush(a, st)
    a.label("L_exit1"); a("s_endpgm")
    rep = []; lines, n = fix_hazards(a.lines, rep)
    return lines, rep
def kernel_ffn2(diag=False):
    a = Asm(); st = Stamps(a, diag)
    prologue(a, 256, "L_exit2")
    st.real(); st.stamp()
    a("s_and_b32 s5, s2, 7")
    a("s_lshr_b32 s6, s2, 3")
    a("s_lshr_b32 s40, s5, 1")
    a("s_lshl_b32 s40, s40, 3")
    a("s_and_b32 s7, s6, 7")
    a("s_add_u32 s40, s40, s7")
    a("s_and_b32 s41, s5, 1")
    a("s_lshl_b32 s41, s41, 2")
    a("s_lshr_b32 s7, s6, 3")
    a("s_add_u32 s41, s41, s7")
    ffn2(a, st=st)
    flush(a, st)
    a.label("L_exit2"); a("s_endpgm")
    rep = []; lines, n = fix_hazards(a.lines, rep)
    return lines, rep
if __name__ == '__main__':
    for f in (kernel_conv, kernel_ffn2):
        lines, rep = f()
        print(f.__name__, len(lines), len(rep))
        for r in rep:
            if 'lds' not in r[1]: print('   ', r)
```

```python
from common import *
L2E = 0x3fb8aa3b; L2E_LO = 0x32a57060; LN2 = 0x3f317218

def cmul(a, dst, x, w, tmp):
    a(f"v_pk_mul_f32 {v(tmp,2)}, {v(x,2)}, {v(w,2)} op_sel:[0,0] op_sel_hi:[0,1]")
    a(f"v_pk_fma_f32 {v(dst,2)}, {v(x,2)}, {v(w,2)}, {v(tmp,2)} op_sel:[1,1,0] op_sel_hi:[1,0,1] neg_lo:[0,1,0]")

KG_STRIDE = 14464; KG_Y = 272 * 21
def kgen(a, sm='sc1', st=None):
    st = st or Stamps(a, False)
    P = 8
    ACC = 64
    a(f"s_load_dwordx16 s[16:31], s[0:1], {KA['Are']}")
    a(f"s_load_dwordx2 s[32:33], s[0:1], {KA['ws']}")
    a("s_mul_i32 s41, s40, 384")
    a("v_lshlrev_b32 v2, 1, v1")
    a("v_add_u32 v2, s41, v2")
    a("s_lshl_b32 s42, s40, 1")
    a("v_mov_b32 v4, s42")
    a(f"s_mul_i32 s43, s4, {KG_STRIDE}")
    a("v_lshlrev_b32 v5, 2, v1")
    a("v_add_u32 v5, s43, v5")
    a("v_and_b32 v6, 31, v1")
    a("v_mul_u32_u24 v6, 272, v6")
    a("v_lshrrev_b32 v7, 5, v1")
    a("v_lshl_add_u32 v6, v7, 4, v6")
    a("v_add_u32 v6, s43, v6")
    a("s_waitcnt lgkmcnt(0)")
    a.vmem("global_load_ushort v3, v4, s[28:29]", 'ldt')
    for ch in range(3):
        for t in range(6):
            a.vmem(f"global_load_ushort v{P+6*ch+t}, v2, s[{16+2*t}:{17+2*t}] offset:{128*ch}", ('p', ch))
    for r in range(16): a(f"v_mov_b32 v{ACC+r}, 0")
    a(f"s_mov_b32 s44, {hex(L2E)}")
    a(f"s_mov_b32 s45, {hex(L2E_LO)}")
    a(f"s_mov_b32 s46, {hex(LN2)}")
    a.wait_vm('ldt')
    a("v_lshlrev_b32 v3, 16, v3")
    a("v_mul_f32 v26, s44, v3")
    a("v_fma_f32 v27, v3, s44, -v26")
    a("v_fma_f32 v27, v3, s45, v27")
    a("v_exp_f32 v26, v26")
    a("v_mul_f32 v27, s46, v27")
    a("v_fma_f32 v26, v26, v27, v26")
    a("v_cvt_pk_bf16_f32 v3, v26, v26")
    a("v_lshlrev_b32 v3, 16, v3")
    C = 28; W1 = 30; W2 = 32; W4 = 34; W8 = 36; W256 = 38; X = 40; Y = 42; XB = 44; TMP = 46; TMP2 = 48; T = 50; O = 56
    FA = 80; FB = 84
    def seed(dst, scale):
        if scale == 1.0:
            a(f"v_exp_f32 v{T}, v{T+4}")
            a(f"v_rndne_f32 v{T+2}, v{T+5}")
            a(f"v_sub_f32 v{T+1}, v{T+5}, v{T+2}")
        else:
            lit = hex(int.from_bytes(__import__('struct').pack('<f', scale), 'little'))
            a(f"v_mul_f32 v{T}, {lit}, v{T+4}")
            a(f"v_mul_f32 v{T+1}, {lit}, v{T+5}")
            a(f"v_exp_f32 v{T}, v{T}")
            a(f"v_rndne_f32 v{T+2}, v{T+1}")
            a(f"v_sub_f32 v{T+1}, v{T+1}, v{T+2}")
        a(f"v_cos_f32 v{T+2}, v{T+1}")
        a(f"v_sin_f32 v{T+3}, v{T+1}")
        a("s_nop 0")
        a(f"v_mul_f32 v{dst}, v{T}, v{T+2}")
        a(f"v_mul_f32 v{dst+1}, v{T}, v{T+3}")
    on = [0]
    def put(row_off, pair, neg):
        o = O + (on[0] % 4); on[0] += 1
        a(f"v_cvt_pk_bf16_f32 v{o}, v{pair}, {'-' if neg else ''}v{pair+1}")
        a.lds(f"ds_write_b32 v5, v{o} offset:{row_off}", 'w')
    for ch in range(3):
        p = P + 6 * ch
        a.wait_vm(('p', ch))
        for t in range(6): a(f"v_lshlrev_b32 v{p+t}, 16, v{p+t}")
        a(f"v_mul_f32 v{T+4}, v3, v{p}")
        a(f"v_mul_f32 v{T+5}, v3, v{p+1}")
        a(f"v_mul_f32 v{p+2}, v3, v{p+2}")
        a(f"v_mul_f32 v{p+3}, v3, v{p+3}")
        a(f"v_mul_f32 v{T+4}, s44, v{T+4}")
        a(f"v_mul_f32 v{T+5}, 0.15915494, v{T+5}")
        a(f"v_mul_f32 v{C}, v{p+4}, v{p+2}")
        a(f"v_mul_f32 v{C+1}, v{p+4}, v{p+3}")
        a(f"v_fma_f32 v{C}, -v{p+5}, v{p+3}, v{C}")
        a(f"v_fma_f32 v{C+1}, v{p+5}, v{p+2}, v{C+1}")
        seed(W1, 1.0); seed(W8, 8.0); seed(W256, 256.0)
        cmul(a, W2, W1, W1, TMP)
        cmul(a, W4, W2, W2, TMP)
        xs = []
        xs.append(('put', C, 0))
        prev = C
        for i in range(1, 8): xs.append(('mul', X, prev, W1, i)); prev = X
        xs.append(('mul', XB, C, W256, 8))
        prev = XB
        for i in range(9, 12): xs.append(('mul', X, prev, W2, i)); prev = X
        xs.append(('mul', XB, XB, W256, 12))
        xs.append(('mul', X, XB, W4, 13))
        xs.append(('mul', XB, XB, W256, 14))
        xs.append(('mul', X, XB, W4, 15))
        for i in range(16, 21): xs.append(('mul', XB, XB, W256, i))
        ys = []
        for b in range(32):
            if b == 0: ys.append(('one',))
            elif b == 1: ys.append(('put', W8, 1))
            elif b == 2: ys.append(('mul', Y, W8, W8, 2))
            else: ys.append(('mul', Y, Y, W8, b))
        def do(step, isx):
            off = lambda r: 272 * r + (0 if isx else KG_Y)
            if step[0] == 'one':
                if ch == 0:
                    a(f"v_mov_b32 v{O+4}, 0x3f80")
                    a.lds(f"ds_write_b32 v5, v{O+4} offset:{off(0)}", 'w')
            elif step[0] == 'put': put(off(step[2]), step[1], isx)
            else:
                _, dst, src, w, row = step
                cmul(a, dst, src, w, TMP if isx else TMP2)
                put(off(row), dst, isx)
        ix = iy = 0
        while ix < len(xs) or iy < len(ys):
            if iy < len(ys): do(ys[iy], False); iy += 1
            if ix < len(xs) and (iy * len(xs) >= ix * len(ys) or iy >= len(ys)): do(xs[ix], True); ix += 1
        def rd(s_):
            b = FA + 8 * (s_ % 2)
            a.lds(f"ds_read_b128 {v(b,4)}, v6 offset:{32*s_}", ('fa', s_))
            a.lds(f"ds_read_b128 {v(b+4,4)}, v6 offset:{KG_Y + 32*s_}", ('fb', s_))
        rd(0)
        for s_ in range(8):
            if s_ + 1 < 8: rd(s_ + 1)
            a.wait_lg(('fa', s_), ('fb', s_))
            b = FA + 8 * (s_ % 2)
            a(f"v_mfma_f32_32x32x16_bf16 {v(ACC,16)}, {v(b,4)}, {v(b+4,4)}, {v(ACC,16)}")
    st.stamp()
    a("s_add_u32 s47, s43, 16")
    a("v_and_b32 v8, 31, v1")
    a("v_lshrrev_b32 v9, 5, v1")
    a("v_cmp_eq_u32 s[48:49], 1, v9")
    a("v_lshlrev_b32 v10, 5, v8")
    a("v_lshl_add_u32 v10, v9, 4, v10")
    a("v_add_u32 v10, s47, v10")
    a("v_lshlrev_b32 v11, 4, v8")
    a("v_add_u32 v11, 1024, v11")
    a("v_lshlrev_b32 v12, 3, v8")
    a("v_add_u32 v13, 1536, v12")
    a("v_add_u32 v14, 1792, v12")
    a("v_add_u32 v15, 8, v11")
    a("v_cndmask_b32 v13, v11, v13, s[48:49]")
    a("v_cndmask_b32 v14, v15, v14, s[48:49]")
    a("v_add_u32 v13, s47, v13")
    a("v_add_u32 v14, s47, v14")
    a("v_lshlrev_b32 v15, 2, v8")
    a("v_lshl_add_u32 v15, v9, 9, v15")
    a("v_add_u32 v15, 2048, v15")
    a("v_add_u32 v15, s47, v15")
    a("v_mov_b32 v16, 0")
    a("v_mov_b32 v17, s47")
    a("v_add_u32 v17, -4, v17")
    a.lds(f"ds_write_b128 v10, {v(ACC,4)}", 'w')
    a.lds(f"ds_write_b64 v13, {v(ACC+4,2)}", 'w')
    a.lds(f"ds_write_b64 v14, {v(ACC+6,2)}", 'w')
    for r in range(4): a.lds(f"ds_write_b32 v15, v{ACC+8+r} offset:{128*r}", 'w')
    a.lds("ds_write_b32 v17, v16", 'w')
    srd(a, 36, 32, 33, SZ_KV, WS_KV)
    a(f"s_mul_i32 s50, s40, {KV_CH}")
    a(f"v_mul_u32_u24 v18, {KV_ROW}, v9")
    a("v_lshl_add_u32 v19, v8, 4, v18")
    a("v_and_b32 v20, 3, v8")
    a("v_lshl_add_u32 v20, v20, 4, v18")
    a("v_add_u32 v19, 64, v19")
    for r in range(4): a(f"v_mov_b32 v{24+r}, 0")
    a.vmem(f"buffer_store_dwordx4 v[24:27], v20, s[36:39], s50 offen {sm}", 'st')
    lvv = 21
    a(f"v_lshlrev_b32 v{lvv}, 2, v9")
    R = 28; OUT = [44, 48]
    on2 = [0]
    def out_store(ps):
        o = OUT[on2[0] % 2]; on2[0] += 1
        return o, (lambda: a.vmem(f"buffer_store_dwordx4 {v(o,4)}, v19, s[36:39], s50 offen offset:{512*ps} {sm}", 'st'))
    a("v_lshlrev_b32 v22, 5, v8")
    a("v_add_u32 v22, s47, v22")
    a(f"v_sub_u32 v22, v22, v{lvv}")
    for e in range(4): a.lds(f"ds_read2_b32 {v(R+2*e,2)}, v22 offset0:{2*e} offset1:{2*e+1}", 'r')
    a.wait_lg('r')
    o, stf = out_store(0)
    for e in range(4): a(f"v_cvt_pk_bf16_f32 v{o+e}, v{R+2*e}, v{R+2*e+1}")
    stf()
    a("v_lshlrev_b32 v22, 4, v8")
    a("v_add_u32 v22, s47, v22")
    a("v_add_u32 v22, 1024, v22")
    a(f"v_sub_u32 v23, v22, v{lvv}")
    a("v_cmp_eq_u32 vcc, 32, v1")
    a("v_add_u32 v36, -4, v22")
    a("v_cndmask_b32 v36, v22, v36, vcc")
    a.lds(f"ds_read2_b32 {v(R,2)}, v23 offset0:1 offset1:2", 'r')
    a.lds(f"ds_read2_b32 {v(R+2,2)}, v23 offset0:3 offset1:4", 'r')
    a.lds(f"ds_read2_b32 {v(R+4,2)}, v22 offset0:0 offset1:2", 'r')
    a.lds(f"ds_read_b32 v{R+6}, v36", 'r')
    a.wait_lg('r')
    o, stf = out_store(1)
    a(f"v_cvt_pk_bf16_f32 v{o}, v{R+6}, v{R+4}")
    a(f"v_cvt_pk_bf16_f32 v{o+1}, v{R}, v{R+1}")
    a(f"v_cvt_pk_bf16_f32 v{o+2}, v{R+5}, v{R+5}")
    a(f"v_cvt_pk_bf16_f32 v{o+3}, v{R+2}, v{R+3}")
    stf()
    a("v_lshlrev_b32 v22, 3, v8")
    a("v_add_u32 v22, s47, v22")
    a("v_add_u32 v22, 1536, v22")
    a(f"v_sub_u32 v23, v22, v{lvv}")
    for i in range(2):
        a.lds(f"ds_read2_b32 {v(R,2)}, v22 offset0:{64*i} offset1:{64*i+1}", 'r')
        a.lds(f"ds_read_b32 v{R+2}, v22 offset:{256*i+8}", 'r')
        a.lds(f"ds_read2_b32 {v(R+4,2)}, v23 offset0:{64*i+1} offset1:{64*i+2}", 'r')
        a.wait_lg('r')
        o, stf = out_store(2 + i)
        a(f"v_cvt_pk_bf16_f32 v{o}, v{R}, v{R}")
        a(f"v_cvt_pk_bf16_f32 v{o+1}, v{R}, v{R+4}")
        a(f"v_cvt_pk_bf16_f32 v{o+2}, v{R+1}, v{R+1}")
        a(f"v_cvt_pk_bf16_f32 v{o+3}, v{R+5}, v{R+2}")
        stf()
    a("v_lshlrev_b32 v22, 2, v8")
    a("v_add_u32 v22, s47, v22")
    a("v_add_u32 v22, 2048, v22")
    a("v_and_b32 v23, 1, v1")
    a("v_xor_b32 v36, 1, v9")
    a("v_and_b32 v36, v36, v23")
    a("v_cmp_eq_u32 s[52:53], 1, v36")
    a("v_xor_b32 v36, 1, v23")
    a("v_and_b32 v36, v36, v9")
    a("v_cmp_eq_u32 s[54:55], 1, v36")
    for i in range(4):
        a.lds(f"ds_read2_b32 {v(R,2)}, v22 offset0:{32*i} offset1:{32*i+1}", 'r')
        a.wait_lg('r')
        o, stf = out_store(4 + i)
        a(f"v_cndmask_b32 v{R+2}, v{R}, v{R+1}, s[52:53]")
        a(f"v_cndmask_b32 v{R+3}, v{R+1}, v{R}, s[54:55]")
        a(f"v_cvt_pk_bf16_f32 v{o}, v{R}, v{R}")
        a(f"v_cvt_pk_bf16_f32 v{o+1}, v{R}, v{R}")
        a(f"v_cvt_pk_bf16_f32 v{o+2}, v{R+2}, v{R+3}")
        a(f"v_cvt_pk_bf16_f32 v{o+3}, v{R+1}, v{R+1}")
        stf()

def t1(a, sm='sc1'):
    a(f"s_load_dwordx2 s[8:9], s[0:1], {KA['u']}")
    a(f"s_load_dwordx2 s[32:33], s[0:1], {KA['ws']}")
    a("s_mul_i32 s43, s4, 20480")
    a("v_lshrrev_b32 v2, 3, v1")
    a("v_mul_u32_u24 v2, 1280, v2")
    a("v_and_b32 v3, 7, v1")
    a("v_lshl_add_u32 v2, v3, 4, v2")
    a(f"s_mul_i32 s44, s40, {128*1280}")
    a("s_lshl_b32 s45, s41, 7")
    a("s_add_u32 s44, s44, s45")
    a("s_waitcnt lgkmcnt(0)")
    srd(a, 8, 8, 9, 2048 * 1280)
    srd(a, 36, 32, 33, SZ_UT, WS_UT)
    for i in range(16):
        a(f"s_add_u32 m0, s43, {1024*i}")
        if i: a(f"s_add_u32 s44, s44, {8*1280}")
        else: a("s_nop 0")
        a.vmem("buffer_load_dwordx4 v2, s[8:11], s44 offen lds", 'x')
    a("v_lshrrev_b32 v4, 4, v1")
    a("v_bfe_u32 v5, v1, 2, 2")
    a("v_lshl_add_u32 v5, v4, 3, v5")
    a("v_lshlrev_b32 v5, 7, v5")
    a("v_and_b32 v6, 3, v1")
    a("v_lshl_add_u32 v5, v6, 3, v5")
    a("v_add_u32 v5, s43, v5")
    a("v_and_b32 v6, 15, v1")
    a("v_lshlrev_b32 v6, 12, v6")
    a("v_lshl_add_u32 v6, v4, 4, v6")
    a("s_lshl_b32 s46, s41, 18")
    a("s_lshl_b32 s47, s40, 8")
    a("s_add_u32 s46, s46, s47")
    a.wait_vm('x')
    n = 0
    for dq in range(4):
        for tq in range(4):
            b = 8 + 4 * (n % 4); n += 1
            for h in range(2):
                a.lds(f"ds_read_b64_tr_b16 {v(b+2*h,2)}, v5 offset:{(32*tq+4*h)*128 + 32*dq}", 'r')
            a(f"s_add_u32 s47, s46, {dq*16*4096 + 64*tq}")
            a.wait_lg('r')
            a.vmem(f"buffer_store_dwordx4 {v(b,4)}, v6, s[36:39], s47 offen {sm}", 'st')

def t3(a, sm='sc1'):
    a(f"s_load_dwordx2 s[8:9], s[0:1], {KA['wd']}")
    a(f"s_load_dwordx2 s[32:33], s[0:1], {KA['ws']}")
    a("s_mul_i32 s43, s4, 20480")
    a("v_lshlrev_b32 v2, 4, v1")
    a(f"s_mul_i32 s44, s40, {32*1280}")
    a("s_mul_i32 s45, s41, 640")
    a("s_add_u32 s44, s44, s45")
    a("s_waitcnt lgkmcnt(0)")
    srd(a, 8, 8, 9, 1536 * 1280)
    srd(a, 36, 32, 33, SZ_W2, WS_W2)
    a("s_mov_b32 exec_lo, -1")
    a("s_mov_b32 exec_hi, 0xff")
    for i in range(32):
        a(f"s_add_u32 m0, s43, {640*i}")
        if i: a("s_add_u32 s44, s44, 1280")
        else: a("s_nop 0")
        a.vmem("buffer_load_dwordx4 v2, s[8:11], s44 offen lds", 'x')
    a("s_mov_b64 exec, -1")
    a("v_lshrrev_b32 v4, 5, v1")
    a("v_lshlrev_b32 v4, 4, v4")
    a("v_bfe_u32 v5, v1, 4, 1")
    a("v_lshl_add_u32 v4, v5, 2, v4")
    a("v_bfe_u32 v5, v1, 2, 2")
    a("v_add_u32 v4, v4, v5")
    a("v_mul_u32_u24 v4, 640, v4")
    a("v_and_b32 v5, 3, v1")
    a("v_lshl_add_u32 v4, v5, 3, v4")
    a("v_add_u32 v4, s43, v4")
    a(f"s_mul_i32 s46, s41, {4*48*5*1024}")
    a(f"s_mul_i32 s47, s40, {5*1024}")
    a("s_add_u32 s46, s46, s47")
    a.wait_vm('x')
    n = 0
    for dti in range(4):
        for dt in range(5):
            b = 8 + 4 * (n % 4); n += 1
            for h in range(2):
                a.lds(f"ds_read_b64_tr_b16 {v(b+2*h,2)}, v4 offset:{2*(80*dti+16*dt) + 8*640*h}", 'r')
            a(f"s_add_u32 s47, s46, {(dti*48*5 + dt)*1024}")
            a.wait_lg('r')
            a.vmem(f"buffer_store_dwordx4 {v(b,4)}, v2, s[36:39], s47 offen {sm}", 'st')

def t2(a, sm='sc1'):
    a(f"s_load_dwordx2 s[8:9], s[0:1], {KA['u']}")
    a(f"s_load_dwordx2 s[12:13], s[0:1], {KA['gw']}")
    a(f"s_load_dwordx2 s[32:33], s[0:1], {KA['ws']}")
    a("v_lshlrev_b32 v2, 4, v1")
    a("v_lshlrev_b32 v3, 2, v1")
    a("v_add_u32 v3, 1024, v3")
    a("s_mul_i32 s44, s40, 1280")
    a("s_waitcnt lgkmcnt(0)")
    srd(a, 8, 8, 9, 2048 * 1280)
    srd(a, 12, 12, 13, 1280)
    srd(a, 36, 32, 33, SZ_G, WS_G)
    a.vmem("buffer_load_dwordx4 v[4:7], v2, s[12:15], 0 offen", 'gw')
    a.vmem("buffer_load_dword v8, v3, s[12:15], 0 offen", 'gw')
    XR = 16
    for r in range(16):
        a.vmem(f"buffer_load_dwordx4 {v(XR+8*r,4)}, v2, s[8:11], s44 offen", ('x', r))
        a.vmem(f"buffer_load_dword v{XR+8*r+4}, v3, s[8:11], s44 offen", ('x', r))
        if r < 15: a("s_add_u32 s44, s44, 1280")
    for r in range(16):
        a.wait_vm('gw', ('x', r))
        b = XR + 8 * r
        a(f"v_mov_b32 v{b+5}, 0")
        for e in range(5):
            a(f"v_dot2_f32_bf16 v{b+5}, v{b+e}, v{4+e}, v{b+5}")
    for sh, mask in (('row_shr:1', '0xf'), ('row_shr:2', '0xf'), ('row_shr:4', '0xf'), ('row_shr:8', '0xf'), ('row_bcast:15', '0xa'), ('row_bcast:31', '0xc')):
        for r in range(16):
            b = XR + 8 * r + 5
            a(f"v_add_f32_dpp v{b}, v{b}, v{b} {sh} row_mask:{mask} bank_mask:0xf")
    a("v_mov_b32 v9, 0")
    for r in range(16):
        a(f"v_readlane_b32 s{48+r}, v{XR+8*r+5}, 63")
    for r in range(16):
        a(f"v_writelane_b32 v9, s{48+r}, {r}")
    a("v_cvt_pk_bf16_f32 v9, v9, v9")
    a("v_lshlrev_b32 v9, 16, v9")
    a(f"v_mul_f32 v9, {hex(L2E | 0x80000000)}, v9")
    a("v_exp_f32 v9, v9")
    a("s_nop 0")
    a("v_add_f32 v9, 1.0, v9")
    a("v_rcp_f32 v9, v9")
    a("s_nop 0")
    a("v_cvt_pk_bf16_f32 v9, v9, v9")
    a("v_lshlrev_b32 v9, 16, v9")
    a("v_lshlrev_b32 v10, 2, v1")
    a("s_lshl_b32 s45, s40, 2")
    a("s_mov_b64 exec, 0xffff")
    a.vmem(f"buffer_store_dword v9, v10, s[36:39], s45 offen {sm}", 'st')

def prefetch_ffn1(a):
    a(f"s_load_dwordx2 s[8:9], s[0:1], {KA['u']}")
    a(f"s_load_dwordx4 s[20:23], s[0:1], {KA['wg']}")
    a("s_lshl_b32 s40, s6, 2")
    a("s_add_u32 s40, s40, s4")
    a("s_lshr_b32 s41, s5, 2")
    a("s_lshl_b32 s41, s41, 10")
    a("s_lshl_b32 s42, s40, 3")
    a("s_add_u32 s41, s41, s42")
    a("s_mul_i32 s41, s41, 1280")
    a("v_and_b32 v2, 7, v1")
    a("v_mul_u32_u24 v2, 1280, v2")
    a("v_bfe_u32 v3, v1, 3, 1")
    a("v_lshl_add_u32 v2, v3, 7, v2")
    a("s_and_b32 s42, s40, 63")
    a("s_mul_i32 s42, s42, 6144")
    a("s_and_b32 s43, s5, 3")
    a("s_mul_i32 s43, s43, 768")
    a("s_add_u32 s42, s42, s43")
    a("v_cmp_le_u32 vcc, 6, v1")
    a("v_mov_b32 v4, 0")
    a("v_mov_b32 v5, 2304")
    a("v_cndmask_b32 v4, v4, v5, vcc")
    a("v_lshl_add_u32 v3, v1, 7, v4")
    a("s_waitcnt lgkmcnt(0)")
    srd(a, 8, 8, 9, 2048 * 1280)
    a("s_cmp_lt_u32 s40, 64")
    a("s_cselect_b32 s12, s20, s22")
    a("s_cselect_b32 s13, s21, s23")
    a(f"s_mov_b32 s14, {640*3072}")
    a(f"s_mov_b32 s15, {hex(SRD3)}")
    for r in range(1, 5):
        a("s_mov_b64 exec, 0xfff")
        a(f"s_add_u32 s43, s42, {128*3072*r}")
        a(f"buffer_load_dword v248, v3, s[12:15], s43 offen")
        a("s_mov_b64 exec, 0xffff")
        a(f"s_add_u32 s43, s41, {256*r}")
        a(f"buffer_load_dword v249, v2, s[8:11], s43 offen")
    a("s_mov_b64 exec, -1")
```

```python
import sys, os
sys.path.insert(0, os.path.dirname(__file__))
from final import *
def with_extra(extra_empty=0, dup0=0, dup_all=0):
    txt, ks = build3()
    launches = [(n, g, 256, lds) for n, l, g, lds in ks]
    if dup0: launches = [launches[0]] * (1 + dup0) + launches[1:]
    if dup_all: launches = launches * (1 + dup_all)
    body = txt[txt.index('.amdgcn_target'):]
    if extra_empty:
        launches += [('mix_e_kernel', 1, 64, 0)] * extra_empty
        body += head('mix_e_kernel') + "s_endpgm\n" + kd('mix_e_kernel', vgpr=8, sgpr=16)
    return header(launches).replace('.amdgcn_target "amdgcn-amd-amdhsa--gfx950"\n.text\n', '') + body
os.makedirs('var', exist_ok=True)
open('base.s', 'w').write(with_extra())
open('e1.s', 'w').write(with_extra(extra_empty=1))
open('e4.s', 'w').write(with_extra(extra_empty=4))
open('dup0.s', 'w').write(with_extra(dup0=1))
open('dupall.s', 'w').write(with_extra(dup_all=1))
```

```python
from common import *
import sync, struct
L2E = 0x3fb8aa3b; L2E_LO = 0x32a57060; LN2 = 0x3f317218
def flit(x): return hex(int.from_bytes(struct.pack('<f', x), 'little'))
CP = 4160; CV_U = 4 * CP; CV_TB = CV_U + 4576; CV_STRIDE = CV_TB + 2592
TASK_LDS = 3 * CV_STRIDE
KG_Y = 272 * 21
UT_SLEEP = 8
USE_PK = False
def cm1(tmp, x, w):
    if USE_PK: return f"v_pk_mul_f32 {v(tmp,2)}, {v(x,2)}, {v(w,2)} op_sel:[0,0] op_sel_hi:[0,1]"
    return f"v_mul_f32 v{tmp}, v{x}, v{w}\nv_mul_f32 v{tmp+1}, v{x}, v{w+1}"
def cm2(dst, x, w, tmp):
    if USE_PK: return f"v_pk_fma_f32 {v(dst,2)}, {v(x,2)}, {v(w,2)}, {v(tmp,2)} op_sel:[1,1,0] op_sel_hi:[1,0,1] neg_lo:[0,1,0]"
    if x == w:
        return f"v_fma_f32 v{dst}, -v{x+1}, v{x+1}, v{tmp}\nv_add_f32 v{dst+1}, v{tmp+1}, v{tmp+1}"
    return f"v_fma_f32 v{dst}, -v{x+1}, v{w+1}, v{tmp}\nv_fma_f32 v{dst+1}, v{x+1}, v{w}, v{tmp+1}"

def channel_wave(a, sm='sc1', st=None, flag_out=False, late_prio=None, nt_params=True, abl=''):
    st = st or Stamps(a, False)
    P = 8; KACC = 192; F = 128
    nt = ' nt' if nt_params else ''
    a(f"s_load_dwordx16 s[16:31], s[0:1], {KA['Are']}")
    a(f"s_load_dwordx2 s[32:33], s[0:1], {KA['ws']}")
    a(f"s_load_dwordx2 s[60:61], s[0:1], {KA['dbg']}")
    a("s_mul_i32 s41, s40, 384")
    a("v_lshlrev_b32 v2, 1, v1")
    a("v_add_u32 v2, s41, v2")
    a("s_lshl_b32 s42, s40, 1")
    a("v_mov_b32 v4, s42")
    a("v_mov_b32 v250, 0")
    a("s_waitcnt lgkmcnt(0)")
    a.vmem("global_load_ushort v3, v4, s[28:29]", 'ldt')
    for ch in range(3):
        for t in range(6):
            a.vmem(f"global_load_ushort v{P+6*ch+t}, v2, s[{16+2*t}:{17+2*t}] offset:{128*ch}{nt}", ('p', ch))
    a.vmem("global_load_ushort v243, v4, s[30:31]", 'dsk')
    a.vmem("global_load_dword v251, v250, s[60:61] sc1", 'nonce')
    a("v_and_b32 v6, 31, v1")
    a("v_mul_u32_u24 v6, 272, v6")
    a("v_lshrrev_b32 v7, 5, v1")
    a("v_lshl_add_u32 v6, v7, 4, v6")
    a("v_add_u32 v6, s43, v6")
    a("s_mov_b32 m0, s43")
    for r in range(16): a(f"v_mov_b32 v{KACC+r}, 0")
    a(f"s_add_u32 s47, s43, {CV_TB + 16}")
    E = 96
    b_, hh = 126, 127
    a(f"v_and_b32 v{b_}, 31, v1")
    a(f"v_lshrrev_b32 v{hh}, 5, v1")
    a(f"v_cmp_eq_u32 s[48:49], 1, v{hh}")
    a(f"v_cmp_eq_u32 s[50:51], 0, v{b_}")
    a(f"v_cmp_eq_u32 s[52:53], 32, v1")
    TW0, TW1, TW2, TW3, TWZ, ZU, ZC = E, E+1, E+2, E+3, E+4, E+5, E+6
    a(f"v_lshlrev_b32 v{TW0}, 5, v{b_}")
    a(f"v_lshl_add_u32 v{TW0}, v{hh}, 4, v{TW0}")
    a(f"v_add_u32 v{TW0}, s47, v{TW0}")
    a(f"v_lshlrev_b32 v60, 4, v{b_}")
    a("v_add_u32 v60, 1024, v60")
    a(f"v_lshlrev_b32 v61, 3, v{b_}")
    a(f"v_add_u32 v{TW1}, 1536, v61")
    a(f"v_add_u32 v{TW2}, 1792, v61")
    a("v_add_u32 v62, 8, v60")
    a(f"v_cndmask_b32 v{TW1}, v60, v{TW1}, s[48:49]")
    a(f"v_cndmask_b32 v{TW2}, v62, v{TW2}, s[48:49]")
    a(f"v_add_u32 v{TW1}, s47, v{TW1}")
    a(f"v_add_u32 v{TW2}, s47, v{TW2}")
    a(f"v_lshlrev_b32 v{TW3}, 2, v{b_}")
    a(f"v_lshl_add_u32 v{TW3}, v{hh}, 9, v{TW3}")
    a(f"v_add_u32 v{TW3}, 2048, v{TW3}")
    a(f"v_add_u32 v{TW3}, s47, v{TW3}")
    a(f"v_mov_b32 v{TWZ}, s47")
    a(f"v_add_u32 v{TWZ}, -16, v{TWZ}")
    a("v_lshlrev_b32 v242, 4, v1")
    a(f"v_add_u32 v{ZU}, s43, v242")
    a("v_lshrrev_b32 v60, 1, v1")
    a(f"v_mul_u32_u24 v60, {CP}, v60")
    a("v_and_b32 v61, 1, v1")
    a("v_lshl_add_u32 v60, v61, 4, v60")
    a(f"v_add_u32 v{ZC}, s43, v60")
    XW, R0, R1a, R1b, R1c, R1d, R2a, R2b, R2c, R2d, R3a, R3b = range(E+7, E+19)
    a(f"v_lshlrev_b32 v63, 2, v{hh}")
    a(f"v_mul_u32_u24 v60, {CP}, v{hh}")
    a(f"v_lshl_add_u32 v{XW}, v{b_}, 4, v60")
    a(f"v_add_u32 v{XW}, s43, v{XW}")
    a(f"v_add_u32 v{XW}, 32, v{XW}")
    a(f"v_lshlrev_b32 v{R0}, 5, v{b_}")
    a(f"v_add_u32 v{R0}, s47, v{R0}")
    a(f"v_sub_u32 v{R0}, v{R0}, v63")
    a(f"v_add_u32 v{R0}, -8, v{R0}")
    a(f"v_lshlrev_b32 v{R1a}, 4, v{b_}")
    a(f"v_add_u32 v{R1a}, s47, v{R1a}")
    a(f"v_add_u32 v{R1a}, 1024, v{R1a}")
    a(f"v_sub_u32 v{R1b}, v{R1a}, v63")
    a(f"v_add_u32 v60, -4, v{R1a}")
    a(f"v_cndmask_b32 v{R1c}, v{R1a}, v60, s[52:53]")
    a(f"v_add_u32 v60, -4, v{R1b}")
    a(f"v_add_u32 v61, -8, v{R1b}")
    a(f"v_cndmask_b32 v{R1d}, v60, v61, s[50:51]")
    a(f"v_lshlrev_b32 v{R2a}, 3, v{b_}")
    a(f"v_add_u32 v{R2a}, s47, v{R2a}")
    a(f"v_add_u32 v{R2a}, 1536, v{R2a}")
    a(f"v_sub_u32 v{R2b}, v{R2a}, v63")
    a(f"v_add_u32 v60, -4, v{R2b}")
    a(f"v_cndmask_b32 v{R2c}, v{R2b}, v60, s[50:51]")
    a(f"v_add_u32 v60, -4, v{R2a}")
    a(f"v_cndmask_b32 v{R2d}, v{R2a}, v60, s[52:53]")
    a(f"v_lshlrev_b32 v{R3a}, 2, v{b_}")
    a(f"v_add_u32 v{R3a}, s47, v{R3a}")
    a(f"v_add_u32 v{R3a}, 2048, v{R3a}")
    a(f"v_add_u32 v60, -4, v{R3a}")
    a(f"v_cndmask_b32 v{R3b}, v{R3a}, v60, s[52:53]")
    a("v_and_b32 v61, 1, v1")
    a(f"v_xor_b32 v60, 1, v{hh}")
    a("v_and_b32 v60, v60, v61")
    a("v_cmp_eq_u32 s[54:55], 1, v60")
    a("v_xor_b32 v60, 1, v61")
    a(f"v_and_b32 v60, v60, v{hh}")
    a("v_cmp_eq_u32 s[56:57], 1, v60")
    a("v_bfe_u32 v60, v1, 2, 2")
    a(f"v_mul_u32_u24 v60, {CP}, v60")
    a("v_lshrrev_b32 v61, 4, v1")
    a("v_lshlrev_b32 v62, 4, v61")
    a("v_sub_u32 v60, v60, v62")
    a("v_and_b32 v62, 3, v1")
    a("v_lshl_add_u32 v60, v62, 3, v60")
    a("v_add_u32 v60, 56, v60")
    a("v_add_u32 v240, s43, v60")
    a("v_and_b32 v60, 15, v1")
    a("v_lshlrev_b32 v244, 4, v60")
    a("v_lshl_add_u32 v244, v61, 2, v244")
    a("v_lshlrev_b32 v60, 5, v60")
    a("v_lshl_add_u32 v60, v61, 4, v60")
    a(f"v_add_u32 v60, {CV_U}, v60")
    a("v_add_u32 v241, s43, v60")
    a("v_lshlrev_b32 v245, 1, v244")
    a(f"v_add_u32 v246, {CV_U + 480}, v245")
    a("v_add_u32 v246, s43, v246")
    for r in range(4): a(f"v_mov_b32 v{120+r}, 0")
    a("s_mov_b64 exec, 0x3fffffff")
    a.lds(f"ds_write_b128 v{ZU}, v[120:123] offset:{CV_U}", 'z')
    a("s_mov_b64 exec, -1")
    srd(a, 12, 32, 33, SZ_UT, WS_UT)
    sync.flag_srd(a, 8, 32, 33)
    srd(a, 36, 32, 33, SZ_T1, WS_T1)
    a("s_lshl_b32 s46, s40, 12")
    a("s_lshr_b32 s45, s40, 6")
    a("s_lshl_b32 s45, s45, 7")
    a(f"s_add_u32 s45, s45, {sync.FL_UT}")
    a(f"s_mov_b32 s44, {hex(L2E)}")
    a(f"s_mov_b32 s34, {hex(L2E_LO)}")
    a(f"s_mov_b32 s35, {hex(LN2)}")
    a.wait_vm('ldt')
    st.stamp()
    a("v_lshlrev_b32 v3, 16, v3")
    a("v_mul_f32 v26, s44, v3")
    a("v_fma_f32 v27, v3, s44, -v26")
    a("v_fma_f32 v27, v3, s34, v27")
    a("v_exp_f32 v26, v26")
    a("v_mul_f32 v27, s35, v27")
    a("v_fma_f32 v26, v26, v27, v26")
    a("v_cvt_pk_bf16_f32 v3, v26, v26")
    a("v_lshlrev_b32 v3, 16, v3")
    SEED = [dict(C=28, W1=30, W2=32, W4=34, W8=36, W256=38, W128=40), dict(C=42, W1=44, W2=46, W4=48, W8=50, W256=52, W128=54)]
    X, XB, YA, YB = 56, 58, 60, 62
    TX, TA, TB_ = 64, 66, 68
    T = 70
    O = 88
    on = [0]
    def put(row_off, pair, neg):
        o = O + (on[0] % 6); on[0] += 1
        a(f"v_cvt_pk_bf16_f32 v{o}, v{pair}, {'-' if neg else ''}v{pair+1}")
        if 'nokw' not in abl: a.lds(f"ds_write_addtid_b32 v{o} offset:{row_off}", 'w')
    def seed_stream(ch):
        S = SEED[ch % 2]; p = P + 6 * ch; L = []
        L.append(lambda: a.wait_vm(('p', ch)))
        e = lambda t: L.append(lambda t=t: a(t))
        for t in range(6): e(f"v_lshlrev_b32 v{p+t}, 16, v{p+t}")
        e(f"v_mul_f32 v{T}, v3, v{p}"); e(f"v_mul_f32 v{T+1}, v3, v{p+1}")
        e(f"v_mul_f32 v{p+2}, v3, v{p+2}"); e(f"v_mul_f32 v{p+3}, v3, v{p+3}")
        e(f"v_mul_f32 v{T}, s44, v{T}"); e(f"v_mul_f32 v{T+1}, 0.15915494, v{T+1}")
        C = S['C']
        e(f"v_mul_f32 v{C}, v{p+4}, v{p+2}"); e(f"v_mul_f32 v{C+1}, v{p+4}, v{p+3}")
        SC = [(S['W1'], 1.0), (S['W8'], 8.0), (S['W256'], 256.0)]
        R = [T + 2 + 5 * i for i in range(3)]
        for (dst, sc), r in zip(SC, R):
            if sc == 1.0:
                e(f"v_exp_f32 v{r}, v{T}"); e(f"v_rndne_f32 v{r+2}, v{T+1}")
            else:
                e(f"v_mul_f32 v{r}, {flit(sc)}, v{T}"); e(f"v_mul_f32 v{r+1}, {flit(sc)}, v{T+1}")
        e(f"v_fma_f32 v{C}, -v{p+5}, v{p+3}, v{C}"); e(f"v_fma_f32 v{C+1}, v{p+5}, v{p+2}, v{C+1}")
        e(f"v_sub_f32 v{R[0]+1}, v{T+1}, v{R[0]+2}")
        for (dst, sc), r in zip(SC[1:], R[1:]):
            e(f"v_exp_f32 v{r}, v{r}"); e(f"v_rndne_f32 v{r+2}, v{r+1}")
        for (dst, sc), r in zip(SC[1:], R[1:]): e(f"v_sub_f32 v{r+1}, v{r+1}, v{r+2}")
        for (dst, sc), r in zip(SC, R):
            e(f"v_cos_f32 v{r+3}, v{r+1}"); e(f"v_sin_f32 v{r+4}, v{r+1}")
        for (dst, sc), r in zip(SC, R):
            e(f"v_mul_f32 v{dst}, v{r}, v{r+3}"); e(f"v_mul_f32 v{dst+1}, v{r}, v{r+4}")
        t1, t2 = T + 2, T + 4
        W1, W2, W4, W8, W128 = S['W1'], S['W2'], S['W4'], S['W8'], S['W128']
        e(cm1(t1, W1, W1)); e(cm1(t2, W8, W8)); e(cm2(W2, W1, W1, t1)); e(cm2(W128, W8, W8, t2))
        e(cm1(t1, W2, W2)); e(cm1(t2, W128, W128)); e(cm2(W4, W2, W2, t1)); e(cm2(W128, W128, W128, t2))
        for _ in range(2): e(cm1(t2, W128, W128)); e(cm2(W128, W128, W128, t2))
        return L
    def mfma(s_):
        a.wait_lg(('fa', s_), ('fb', s_))
        a(f"v_mfma_f32_32x32x16_bf16 {v(KACC,16)}, {v(F+8*s_,4)}, {v(F+8*s_+4,4)}, {v(KACC,16)}")
    def frag_reads():
        for s_ in range(8):
            a.lds(f"ds_read_b128 {v(F+8*s_,4)}, v6 offset:{32*s_}", ('fa', s_))
            a.lds(f"ds_read_b128 {v(F+8*s_+4,4)}, v6 offset:{KG_Y + 32*s_}", ('fb', s_))
    def check_nonce():
        lab = a.newlabel('L_have_nonce')
        a.wait_vm('nonce')
        a(f"v_readfirstlane_b32 s{sync.NONCE}, v251")
        a(f"s_cmp_lg_u32 s{sync.NONCE}, 0")
        a(f"s_cbranch_scc1 {lab}")
        keep = (list(a.vm), list(a.lg))
        sync.get_nonce(a)
        a.label(lab)
        a.vm, a.lg = keep[0], keep[1]
        a(f"v_lshlrev_b32 v248, 2, v1")
        a("s_mov_b32 exec_hi, 0")
        a.vmem("buffer_load_dword v250, v248, s[8:11], s45 offen sc1", 'fl')
        a("s_mov_b64 exec, -1")
    for f_ in seed_stream(0): f_()
    for ch in range(3):
        S = SEED[ch % 2]
        C, W1, W2, W4, W8, W256, W128 = S['C'], S['W1'], S['W2'], S['W4'], S['W8'], S['W256'], S['W128']
        xs = [('put', C, 0)]; prev = C
        for i in range(1, 8): xs.append(('mul', X, prev, W1, i)); prev = X
        xs.append(('mul', XB, C, W256, 8)); prev = XB
        for i in range(9, 12): xs.append(('mul', X, prev, W2, i)); prev = X
        xs.append(('mul', XB, XB, W256, 12)); xs.append(('mul', X, XB, W4, 13))
        xs.append(('mul', XB, XB, W256, 14)); xs.append(('mul', X, XB, W4, 15))
        for i in range(16, 21): xs.append(('mul', XB, XB, W256, i))
        ya = [('one',), ('put', W8, 1), ('mul', YA, W8, W8, 2)] + [('mul', YA, YA, W8, b) for b in range(3, 16)]
        yb = [('put', W128, 16), ('mul', YB, W128, W8, 17)] + [('mul', YB, YB, W8, b) for b in range(18, 32)]
        nxt = seed_stream(ch + 1) if ch < 2 else []
        per = {i: 0 for i in range(21)}
        if nxt:
            wts = {i: (1 if i < 16 else 3) for i in range(11, 21)}
            tot = sum(wts.values()); acc_ = 0; done = 0
            for i in range(11, 21):
                acc_ += wts[i]; k = len(nxt) * acc_ // tot; per[i] = k - done; done = k
        ni = 0
        for i in range(21):
            steps = []
            if i < len(xs): steps.append((xs[i], True, TX))
            if i < len(ya): steps.append((ya[i], False, TA))
            if i < len(yb): steps.append((yb[i], False, TB_))
            fill = nxt[ni:ni + per[i]]; ni += per[i]
            h = (len(fill) + 2) // 3
            for st_, isx, tmp in steps:
                if st_[0] == 'mul' and 'nomul' not in abl: a(cm1(tmp, st_[2], st_[3]))
            for f_ in fill[:h]: f_()
            for st_, isx, tmp in steps:
                if st_[0] == 'mul' and 'nomul' not in abl: a(cm2(st_[1], st_[2], st_[3], tmp))
            if ch > 0 and 1 <= i <= 8: mfma(i - 1)
            for f_ in fill[h:2*h]: f_()
            for st_, isx, tmp in steps:
                off = lambda r: 272 * r + (0 if isx else KG_Y)
                if st_[0] == 'one':
                    if ch == 0:
                        a(f"v_mov_b32 v94, 0x3f80")
                        a.lds(f"ds_write_addtid_b32 v94 offset:{off(0)}", 'w')
                elif st_[0] == 'put': put(off(st_[2]), st_[1], isx)
                else: put(off(st_[4]), st_[1], isx)
            for f_ in fill[2*h:]: f_()
        frag_reads()
        if ch == 1: check_nonce()
        if ch < 2: st.stamp()
    lab = a.newlabel('L_ut_ready')
    a.wait_vm('fl')
    a("s_mov_b32 exec_hi, 0")
    a(f"v_cmp_ne_u32 vcc, s{sync.NONCE}, v250")
    a("s_mov_b64 exec, -1")
    a("s_nop 0")
    a("s_cmp_eq_u64 vcc, 0")
    a(f"s_cbranch_scc1 {lab}")
    keep = list(a.lg)
    if 'nowait' not in abl: sync.wait_flags(a, 8, 45, 32, sleep=UT_SLEEP)
    a.label(lab)
    a.vm = []; a.lg = keep
    for i in range(4):
        a(f"s_add_u32 m0, s43, {CV_U + 480 + 1024*i}")
        a(f"s_add_u32 s45, s46, {1024*i}")
        a.vmem("buffer_load_dwordx4 v242, s[12:15], s45 offen sc1 lds", 'u')
    for s_ in range(8): mfma(s_)
    st.stamp()
    if 'kgenonly' in abl: a("s_endpgm")
    T0 = KACC
    for r in range(4): a(f"v_mov_b32 v{120+r}, 0")
    a.lds(f"ds_write_b128 v{TW0}, {v(T0,4)}", 'w')
    a.lds(f"ds_write_b64 v{TW1}, {v(T0+4,2)}", 'w')
    a.lds(f"ds_write_b64 v{TW2}, {v(T0+6,2)}", 'w')
    a("s_mov_b32 exec_hi, 1")
    a.lds(f"ds_write_b32 v{TW3}, v{T0+8}", 'w')
    a("s_mov_b32 exec_hi, 0")
    for r in range(1, 4): a.lds(f"ds_write_b32 v{TW3}, v{T0+8+r} offset:{128*r}", 'w')
    a("s_mov_b64 exec, 1")
    a.lds(f"ds_write_b128 v{TWZ}, v[120:123]", 'w')
    a("s_mov_b64 exec, 0xff")
    a.lds(f"ds_write_b128 v{ZC}, v[120:123]", 'z')
    a("s_mov_b64 exec, -1")
    R = 8
    rd = lambda txt, tag: a.lds(txt, tag)
    for e in range(5): rd(f"ds_read2_b32 {v(R+2*e,2)}, v{R0} offset0:{2*e} offset1:{2*e+1}", 0)
    rd(f"ds_read2_b32 {v(R+10,2)}, v{R1b} offset0:1 offset1:2", 1)
    rd(f"ds_read2_b32 {v(R+12,2)}, v{R1b} offset0:3 offset1:4", 1)
    rd(f"ds_read2_b32 {v(R+14,2)}, v{R1a} offset0:0 offset1:2", 1)
    rd(f"ds_read_b32 v{R+16}, v{R1c}", 1)
    rd(f"ds_read2_b32 {v(R+18,2)}, v{R1d} offset0:0 offset1:1", 1)
    for i in range(2):
        b = R + 20 + 8 * i
        rd(f"ds_read2_b32 {v(b,2)}, v{R2a} offset0:{64*i} offset1:{64*i+1}", 2 + i)
        rd(f"ds_read_b32 v{b+2}, v{R2a} offset:{256*i+8}", 2 + i)
        rd(f"ds_read2_b32 {v(b+4,2)}, v{R2b} offset0:{64*i+1} offset1:{64*i+2}", 2 + i)
        if i == 0:
            rd(f"ds_read_b32 v{b+6}, v{R2c}", 2); rd(f"ds_read_b32 v{b+7}, v{R2d}", 2)
        else:
            rd(f"ds_read_b32 v{b+6}, v{R2b} offset:256", 3)
    for i in range(4):
        b = R + 36 + 4 * i
        rd(f"ds_read2_b32 {v(b,2)}, v{R3a} offset0:{32*i} offset1:{32*i+1}", 4 + i)
        if i == 0: rd(f"ds_read_b32 v{b+2}, v{R3b}", 4)
    ACC = 192; A0 = 64; B0 = 224
    for r in range(32): a(f"v_mov_b32 v{ACC+r}, 0")
    OUT = [128, 136, 144, 152]
    def emit(ps, d, dm1):
        o = OUT[ps % 4]
        for e in range(4): a(f"v_cvt_pk_bf16_f32 v{o+e}, v{d[e][0]}, v{d[e][1]}")
        a.lds(f"ds_write_b128 v{XW}, {v(o,4)} offset:{512*ps}", 'w')
        seq = [dm1] + d[:3]
        for e in range(4): a(f"v_cvt_pk_bf16_f32 v{o+4+e}, v{seq[e][0]}, v{seq[e][1]}")
        a.lds(f"ds_write_b128 v{XW}, {v(o+4,4)} offset:{512*ps + 2*CP}", 'w')
    a.wait_lg(0)
    emit(0, [(R+2+2*e, R+3+2*e) for e in range(4)], (R, R+1))
    a.wait_lg(1)
    emit(1, [(R+16, R+14), (R+10, R+11), (R+15, R+15), (R+12, R+13)], (R+18, R+19))
    for i in range(2):
        b = R + 20 + 8 * i
        a.wait_lg(2 + i)
        dm1 = (b+6, b+7) if i == 0 else (b+6, b)
        emit(2 + i, [(b, b), (b, b+4), (b+1, b+1), (b+5, b+2)], dm1)
    for i in range(4):
        b = R + 36 + 4 * i
        a.wait_lg(4 + i)
        a(f"v_cndmask_b32 v60, v{b}, v{b+1}, s[54:55]")
        a(f"v_cndmask_b32 v61, v{b+1}, v{b}, s[56:57]")
        dm1 = (b+2, b) if i == 0 else (b, b)
        emit(4 + i, [(b, b), (b, b), (60, 61), (b+1, b+1)], dm1)
    st.stamp()
    if late_prio is not None: a(f"s_setprio {late_prio}")
    def loadA(beta):
        bp = beta % 32
        for half in range(2):
            a.lds(f"ds_read_b64_tr_b16 {v(A0+4*bp+2*half,2)}, v240 offset:{64*beta + 8*(1-half)}", ('A', beta))
    def loadB(z, slot):
        a.lds(f"ds_read_b128 {v(B0+4*slot,4)}, v241 offset:{448 - 64*z}", ('B', z))
    def phase(ph):
        zs = list(range(7, -57 if ph == 0 else -25, -1))
        def needA(z): return [z + 8 * c for c in range(8) if 32 * ph <= z + 8 * c < 32 * ph + 32]
        loadedA = set()
        if ph == 0:
            for n in range(2):
                for b in needA(zs[n]): loadA(b); loadedA.add(b)
            a.wait_vm('u')
        for n in range(3): loadB(zs[n], n % 4)
        for n, z in enumerate(zs):
            if n + 3 < len(zs): loadB(zs[n + 3], (n + 3) % 4)
            if ph == 0 and n + 2 < len(zs):
                for b in needA(zs[n + 2]):
                    if b not in loadedA: loadA(b); loadedA.add(b)
            a.wait_lg(('B', z))
            for c in range(8):
                beta = z + 8 * c
                if not (32 * ph <= beta < 32 * ph + 32): continue
                a.wait_lg(('A', beta))
                a(f"v_mfma_f32_16x16x32_bf16 {v(ACC+4*c,4)}, {v(A0+4*(beta % 32),4)}, {v(B0+4*(n%4),4)}, {v(ACC+4*c,4)}")
            if ph == 0:
                bp = z + 56
                if 0 <= bp < 32: loadA(32 + bp)
    phase(0)
    phase(1)
    st.stamp()
    U0 = 64
    for c in range(8): a.lds(f"ds_read_b64 {v(U0+2*c,2)}, v246 offset:{512*c}", ('uu', c))
    a("v_lshlrev_b32 v243, 16, v243")
    a("s_mov_b32 s48, 0xffff0000")
    for c in range(8):
        a.wait_lg(('uu', c))
        T = 96 + 16 * (c % 2); y = ACC + 4 * c; u0 = U0 + 2 * c
        a(f"v_lshlrev_b32 v{T}, 16, v{u0}")
        a(f"v_and_b32 v{T+1}, s48, v{u0}")
        a(f"v_lshlrev_b32 v{T+2}, 16, v{u0+1}")
        a(f"v_and_b32 v{T+3}, s48, v{u0+1}")
        a(f"v_cvt_pk_bf16_f32 v{T+6}, v{y}, v{y+1}")
        a(f"v_cvt_pk_bf16_f32 v{T+7}, v{y+2}, v{y+3}")
        for r in range(4): a(f"v_mul_f32 v{T+r}, v243, v{T+r}")
        a(f"v_lshlrev_b32 v{T+10}, 16, v{T+6}")
        a(f"v_and_b32 v{T+11}, s48, v{T+6}")
        a(f"v_cvt_pk_bf16_f32 v{T+4}, v{T}, v{T+1}")
        a(f"v_cvt_pk_bf16_f32 v{T+5}, v{T+2}, v{T+3}")
        a(f"v_lshlrev_b32 v{T+12}, 16, v{T+7}")
        a(f"v_and_b32 v{T+13}, s48, v{T+7}")
        a(f"v_lshlrev_b32 v{T}, 16, v{T+4}")
        a(f"v_and_b32 v{T+1}, s48, v{T+4}")
        a(f"v_lshlrev_b32 v{T+2}, 16, v{T+5}")
        a(f"v_and_b32 v{T+3}, s48, v{T+5}")
        a(f"v_add_f32 v{T}, v{T}, v{T+10}")
        a(f"v_add_f32 v{T+1}, v{T+1}, v{T+11}")
        a(f"v_add_f32 v{T+2}, v{T+2}, v{T+12}")
        a(f"v_add_f32 v{T+3}, v{T+3}, v{T+13}")
        a(f"v_cvt_pk_bf16_f32 v{T+8}, v{T}, v{T+1}")
        a(f"v_cvt_pk_bf16_f32 v{T+9}, v{T+2}, v{T+3}")
        a(f"s_add_u32 s47, s46, {512*c}")
        a.vmem(f"buffer_store_dwordx2 {v(T+8,2)}, v245, s[36:39], s47 offen {sm}", 'st')
    if flag_out:
        a("s_lshl_b32 s47, s40, 2")
        a(f"s_add_u32 s47, s47, {sync.FL_A}")
        sync.set_flag(a, 8, 47)

def t1s(a, ldsbase_sreg, sm='sc1', st=None, nt=False):
    st = st or Stamps(a, False)
    B = ldsbase_sreg
    a(f"s_load_dwordx2 s[8:9], s[0:1], {KA['u']}")
    a(f"s_load_dwordx2 s[32:33], s[0:1], {KA['ws']}")
    a(f"s_load_dwordx2 s[60:61], s[0:1], {KA['dbg']}")
    a("v_lshrrev_b32 v2, 3, v1")
    a("v_mul_u32_u24 v2, 1280, v2")
    a("v_and_b32 v3, 7, v1")
    a("v_lshl_add_u32 v2, v3, 4, v2")
    a(f"s_mul_i32 s44, s40, {64*1280}")
    a("s_lshl_b32 s45, s41, 7")
    a("s_add_u32 s44, s44, s45")
    a("v_mov_b32 v250, 0")
    a("s_waitcnt lgkmcnt(0)")
    srd(a, 8, 8, 9, 2048 * 1280)
    srd(a, 36, 32, 33, SZ_UT, WS_UT)
    for i in range(8):
        a(f"s_add_u32 m0, s{B}, {1024*i}")
        if i: a(f"s_add_u32 s44, s44, {8*1280}")
        else: a("s_nop 0")
        a.vmem(f"buffer_load_dwordx4 v2, s[8:11], s44 offen {'nt ' if nt else ''}lds", 'x')
    a.vmem("global_load_dword v251, v250, s[60:61] sc1", 'nonce')
    a("v_lshrrev_b32 v4, 4, v1")
    a("v_bfe_u32 v5, v1, 2, 2")
    a("v_lshl_add_u32 v5, v4, 3, v5")
    a("v_lshlrev_b32 v5, 7, v5")
    a("v_and_b32 v6, 3, v1")
    a("v_lshl_add_u32 v5, v6, 3, v5")
    a(f"v_add_u32 v5, s{B}, v5")
    a(f"s_add_u32 s48, s{B}, 8192")
    a("v_and_b32 v6, 15, v1")
    a("v_and_b32 v7, 7, v6")
    a("v_xor_b32 v7, v7, v4")
    for tq in range(2):
        a(f"v_xor_b32 v3, {4*tq}, v7")
        a("v_lshlrev_b32 v3, 4, v3")
        a(f"v_lshl_add_u32 v{56+tq}, v6, 7, v3")
        a(f"v_add_u32 v{56+tq}, s48, v{56+tq}")
    a("v_lshrrev_b32 v6, 3, v1")
    a("v_and_b32 v7, 7, v1")
    a("v_xor_b32 v3, v6, v7")
    a("v_lshlrev_b32 v3, 4, v3")
    a("v_lshl_add_u32 v60, v6, 7, v3")
    a("v_add_u32 v60, s48, v60")
    a("v_lshlrev_b32 v7, 4, v7")
    a("v_lshl_add_u32 v6, v6, 12, v7")
    a("s_lshl_b32 s46, s41, 18")
    a("s_lshl_b32 s47, s40, 7")
    a("s_add_u32 s46, s46, s47")
    a.wait_vm('x')
    st.stamp()
    for dq in range(4):
        for tq in range(2):
            for h in range(2):
                a.lds(f"ds_read_b64_tr_b16 {v(8+4*tq+2*h,2)}, v5 offset:{(32*tq+4*h)*128 + 32*dq}", ('r', tq))
        for tq in range(2):
            a.wait_lg(('r', tq))
            a.lds(f"ds_write_b128 v{56+tq}, {v(8+4*tq,4)}", 'w')
        for stp in range(2):
            a.lds(f"ds_read_b128 {v(24+8*(dq%2)+4*stp,4)}, v60 offset:{1024*stp}", ('q', stp))
        for stp in range(2):
            a(f"s_add_u32 s47, s46, {(dq*16 + 8*stp)*4096}")
            a.wait_lg(('q', stp))
            a.vmem(f"buffer_store_dwordx4 {v(24+8*(dq%2)+4*stp,4)}, v6, s[36:39], s47 offen {sm}", 'st')
    st.stamp()
    lab = a.newlabel('L_t1_nonce')
    a.wait_vm('nonce')
    a(f"v_readfirstlane_b32 s{sync.NONCE}, v251")
    a(f"s_cmp_lg_u32 s{sync.NONCE}, 0")
    a(f"s_cbranch_scc1 {lab}")
    sync.get_nonce(a)
    a.label(lab)
    sync.flag_srd(a, 8, 32, 33)
    a("s_lshl_b32 s47, s41, 5")
    a("s_add_u32 s47, s47, s40")
    a("s_lshl_b32 s47, s47, 2")
    a(f"s_add_u32 s47, s47, {sync.FL_UT}")
    sync.set_flag(a, 8, 47)
```

```python
from asmlib import *
KA = dict(u=0, Are=8, Aim=16, Bre=24, Bim=32, Cre=40, Cim=48, ldt=56, Dsk=64, Bx=72, wg=80, wu=88, wd=96, gw=104, out=112, dbg=120, ws=128)
L, D, F, N = 2048, 640, 1536, 192
WS_H   = 0x0;       SZ_H   = 128 * 48 * 1024
WS_W2  = 0x600000;  SZ_W2  = 8 * 48 * 5 * 1024
WS_UT  = 0x7E0000;  SZ_UT  = 640 * 4096
WS_KV  = 0xA60000;  KV_ROW = 4224; KV_CH = 2 * KV_ROW; SZ_KV = 640 * KV_CH
WS_G   = 0xF88000;  SZ_G   = 8192
WS_T1  = 0xF90000;  SZ_T1  = 640 * 4096
WS_TB  = 0xA60000;  TB_ROW = 2688; SZ_TB = 640 * TB_ROW
WS_FL  = 0x1220000; SZ_FL = 8192
import os as _os
WS_BASE = int(_os.environ.get('WS_BASE', '0'), 0)
WS_H += WS_BASE; WS_W2 += WS_BASE; WS_UT += WS_BASE; WS_KV += WS_BASE; WS_G += WS_BASE; WS_T1 += WS_BASE; WS_TB += WS_BASE; WS_FL += WS_BASE
SRD3 = 0x00020000

def srd(a, base, lo, hi, size, add=0):
    if add:
        a(f"s_add_u32 s{base}, s{lo}, {hex(add)}")
        a(f"s_addc_u32 s{base+1}, s{hi}, 0")
    else:
        if base != lo: a(f"s_mov_b32 s{base}, s{lo}")
        if base + 1 != hi: a(f"s_mov_b32 s{base+1}, s{hi}")
    a(f"s_mov_b32 s{base+2}, {hex(size)}")
    a(f"s_mov_b32 s{base+3}, {hex(SRD3)}")

def kd(name, vgpr=256, sgpr=96):
    return f""".section .rodata,"a"
.p2align 6
.amdhsa_kernel {name}
  .amdhsa_next_free_vgpr {vgpr}
  .amdhsa_next_free_sgpr {sgpr}
  .amdhsa_accum_offset {min(256, (vgpr + 3) // 4 * 4)}
  .amdhsa_group_segment_fixed_size 0
  .amdhsa_kernarg_size 136
  .amdhsa_user_sgpr_count 2
  .amdhsa_user_sgpr_kernarg_segment_ptr 1
  .amdhsa_system_sgpr_workgroup_id_x 1
.end_amdhsa_kernel
.text
"""
def head(name):
    return f""".globl {name}
.p2align 8
.type {name},@function
{name}:
"""

STAMP_BASE = 64
DBG_STAMPS = False
class Stamps:
    def __init__(self, a, on): self.a = a; self.on = on; self.n = 0
    def real(self):
        if not self.on: return
        self.a(f"s_memrealtime s[{STAMP_BASE+2*self.n}:{STAMP_BASE+2*self.n+1}]"); self.n += 1
    def stamp(self):
        if not self.on: return
        self.a(f"{'s_memrealtime' if DBG_STAMPS else 's_memtime'} s[{STAMP_BASE+2*self.n}:{STAMP_BASE+2*self.n+1}]"); self.n += 1
    def flush(self, slot_sreg, vt=250):
        if not self.on: return
        a = self.a
        if DBG_STAMPS:
            lab = a.newlabel('L_nodbg')
            a("s_waitcnt vmcnt(0) lgkmcnt(0)")
            a(f"s_cmp_eq_u32 s2, {DBG_STAMPS - 1}")
            a(f"s_cbranch_scc0 {lab}")
            a("s_cmp_eq_u32 s4, 0")
            a(f"s_cbranch_scc0 {lab}")
            a(f"s_load_dwordx2 s[96:97], s[0:1], {KA['dbg']}")
            a("s_waitcnt lgkmcnt(0)")
            a("v_mov_b32 v250, 0")
            for k in range(1, self.n):
                a(f"s_sub_u32 s98, s{STAMP_BASE+2*k}, s{STAMP_BASE}")
                a("v_mov_b32 v251, s98")
                a(f"global_store_dword v250, v251, s[96:97] offset:{4*k}")
            a("s_waitcnt vmcnt(0)")
            a.label(lab)
            return
        a("s_waitcnt vmcnt(0) lgkmcnt(0)")
        a(f"s_load_dwordx2 s[96:97], s[0:1], {KA['ws']}")
        a("s_waitcnt lgkmcnt(0)")
        a("s_add_u32 s96, s96, 0x8000000")
        a("s_addc_u32 s97, s97, 0")
        a(f"s_lshl_b32 s98, s{slot_sreg}, 6")
        a(f"v_mov_b32 v{vt}, s98")
        for k in range(self.n):
            a(f"v_mov_b32 v{vt+1}, s{STAMP_BASE+2*k}")
            a(f"global_store_dword v{vt}, v{vt+1}, s[96:97] offset:{4*k}")
        a("s_waitcnt vmcnt(0)")
```

```python
from common import *
def ffn1(a, store_mods='sc1', prio=None, st=None, prefetch=False, fine=False, rot=1, pk_epi=False, hooks=None, split_prologue=1, ntx=False, ntw=False):
    hooks = hooks or {}
    st = st or Stamps(a, False)
    LANE = 1
    VX = 2; VW = 4; BA = 7; BB = 10; VH = 14
    AS = [16, 36]; BS = [28, 48]
    T = 56
    ACC = 96
    WS0 = 0; XS0 = 49152
    acc = lambda m, cb: ACC + 16 * (2 * m + cb)
    a(f"s_load_dwordx2 s[8:9], s[0:1], {KA['u']}")
    a(f"s_load_dwordx4 s[20:23], s[0:1], {KA['wg']}")
    a(f"s_load_dwordx2 s[16:17], s[0:1], {KA['ws']}")
    a(f"v_and_b32 v{LANE}, 63, v0")
    for e in range(2):
        a(f"v_lshrrev_b32 v{T}, 3, v{LANE}")
        if e: a(f"v_add_u32 v{T}, 8, v{T}")
        a(f"v_lshrrev_b32 v{T+1}, 1, v{T}")
        a(f"v_and_b32 v{T+1}, 7, v{T+1}")
        a(f"v_and_b32 v{T+2}, 7, v{LANE}")
        a(f"v_xor_b32 v{T+1}, v{T+1}, v{T+2}")
        a(f"v_lshlrev_b32 v{T+1}, 4, v{T+1}")
        a(f"v_mul_u32_u24 v{T}, 1280, v{T}")
        a(f"v_add_u32 v{VX+e}, v{T}, v{T+1}")
    a("s_lshl_b32 s24, s40, 7")
    a("s_lshl_b32 s25, s4, 5")
    a("s_add_u32 s24, s24, s25")
    a("s_mul_i32 s24, s24, 1280")
    for e in range(2): a(f"v_add_u32 v{VX+e}, s24, v{VX+e}")
    a("s_lshr_b32 s26, s4, 1")
    a("s_and_b32 s27, s4, 1")
    a("s_mul_i32 s28, s27, 192")
    a("s_lshl_b32 s29, s26, 1")
    a("s_mul_i32 s30, s41, 192")
    a("s_mov_b32 s31, 43691")
    for ii in range(3):
        a(f"v_add_u32 v{T}, s28, v{LANE}")
        if ii: a(f"v_add_u32 v{T}, {64*ii}, v{T}")
        a(f"v_mul_u32_u24 v{T+1}, s31, v{T}")
        a(f"v_lshrrev_b32 v{T+1}, 19, v{T+1}")
        a(f"v_mul_u32_u24 v{T+2}, 12, v{T+1}")
        a(f"v_sub_u32 v{T+2}, v{T}, v{T+2}")
        a(f"v_xor_b32 v{T+2}, s29, v{T+2}")
        a(f"v_lshlrev_b32 v{T+2}, 4, v{T+2}")
        a(f"v_mul_u32_u24 v{T+1}, 3072, v{T+1}")
        a(f"v_add3_u32 v{VW+ii}, v{T+1}, v{T+2}, s30")
    a(f"v_lshrrev_b32 v{T}, 4, v{LANE}")
    a(f"v_and_b32 v{T+1}, 1, v{T}")
    a(f"v_lshrrev_b32 v{T+2}, 1, v{T}")
    a(f"v_bfe_u32 v{T+3}, v{LANE}, 2, 2")
    a(f"v_lshl_add_u32 v{T+2}, v{T+2}, 3, v{T+3}")
    a(f"v_mul_u32_u24 v{T+2}, 192, v{T+2}")
    a(f"v_mul_u32_u24 v{T+3}, 6144, v{T+1}")
    a(f"v_add_u32 v{T+2}, v{T+2}, v{T+3}")
    a(f"v_and_b32 v{T+3}, 1, v{LANE}")
    a(f"v_lshl_add_u32 v{T+2}, v{T+3}, 3, v{T+2}")
    a(f"v_bfe_u32 v{T+3}, v{LANE}, 1, 1")
    a(f"v_lshlrev_b32 v{T+1}, 1, v{T+1}")
    a("s_mul_i32 s32, s26, 6")
    for m in range(3):
        a(f"v_add_u32 v{T+4}, s32, v{T+3}")
        if m: a(f"v_add_u32 v{T+4}, {2*m}, v{T+4}")
        a(f"v_xor_b32 v{T+4}, v{T+4}, v{T+1}")
        a(f"v_lshl_add_u32 v{BA+m}, v{T+4}, 4, v{T+2}")
    a(f"v_and_b32 v{T}, 31, v{LANE}")
    a("s_lshl_b32 s33, s27, 6")
    a(f"v_add_u32 v{T}, s33, v{T}")
    a(f"v_bfe_u32 v{T+1}, v{T}, 1, 3")
    a(f"v_lshrrev_b32 v{T+2}, 5, v{LANE}")
    a(f"v_lshlrev_b32 v{T}, 7, v{T}")
    a(f"v_add_u32 v{T}, {XS0}, v{T}")
    for s_ in range(4):
        a(f"v_add_u32 v{T+3}, {2*s_}, v{T+2}")
        a(f"v_xor_b32 v{T+3}, v{T+3}, v{T+1}")
        a(f"v_lshl_add_u32 v{BB+s_}, v{T+3}, 4, v{T}")
    a(f"v_bfe_u32 v{T}, v{LANE}, 4, 1")
    a(f"v_mul_u32_u24 v{T}, {48*1024}, v{T}")
    a(f"v_lshlrev_b32 v{T+1}, 8, v{T+2}")
    a(f"v_and_b32 v{T+3}, 15, v{LANE}")
    a(f"v_lshlrev_b32 v{T+3}, 4, v{T+3}")
    a(f"v_add3_u32 v{VH}, v{T}, v{T+1}, v{T+3}")
    a("s_mul_i32 s34, s26, 6144")
    a("s_mul_i32 s35, s27, 3072")
    a("s_add_u32 s34, s34, s35")
    a("s_lshl_b32 s35, s4, 12")
    a(f"s_add_u32 s35, s35, {XS0}")
    a("s_waitcnt lgkmcnt(0)")
    srd(a, 8, 8, 9, 2048 * 1280)
    a("s_cmp_eq_u32 s26, 0")
    a("s_cselect_b32 s12, s20, s22")
    a("s_cselect_b32 s13, s21, s23")
    a(f"s_mov_b32 s14, {640*3072}")
    a(f"s_mov_b32 s15, {hex(SRD3)}")
    srd(a, 16, 16, 17, SZ_H, WS_H)
    if prio is not None: a(f"s_setprio {prio}")

    if rot > 1:
        a("s_and_b32 s54, s6, 7")
        a("s_lshr_b32 s55, s6, 3")
        a("s_add_u32 s54, s54, s55")
        a(f"s_mul_i32 s55, s54, {(65536 + rot - 1) // rot}")
        a("s_lshr_b32 s55, s55, 16")
        a(f"s_mul_i32 s55, s55, {rot}")
        a("s_sub_u32 s54, s54, s55")
        a(f"s_mul_i32 s54, s54, {10 // rot}")
        a(f"s_mul_i32 s52, s54, {2*98304}")
        a("s_lshl_b32 s53, s54, 7")
    else:
        a("s_mov_b32 s52, 0"); a("s_mov_b32 s53, 0")
    def dmaW(j, ii):
        if ii == 0:
            a("s_mov_b32 s36, s52")
            a("s_add_u32 s52, s52, 98304")
            a(f"s_cmp_ge_u32 s52, {20*98304}")
            a("s_cselect_b32 s52, 0, s52")
        a(f"s_add_u32 m0, s34, {(j % 4) * 12288 + 1024 * ii}")
        a.vmem(f"buffer_load_dwordx4 v{VW+ii}, s[12:15], s36 offen {'nt ' if ntw else ''}lds", ('W', j))
    def dmaX(i, ii):
        if ii == 0:
            a("s_mov_b32 s37, s53")
            a("s_add_u32 s53, s53, 128")
            a("s_cmp_ge_u32 s53, 1280")
            a("s_cselect_b32 s53, 0, s53")
        if ii == 2: a("s_add_u32 s37, s37, 20480")
        a(f"s_add_u32 m0, s35, {(i % 2) * 16384 + 1024 * ii}")
        a.vmem(f"buffer_load_dwordx4 v{VX+(ii & 1)}, s[8:11], s37 offen {'nt ' if ntx else ''}lds", ('X', i))
    def reads(j, ks, st):
        R = []
        i = j // 2; sx = (j % 2) * 2 + ks
        def rA(m, h):
            return lambda: a.lds(f"ds_read_b64_tr_b16 {v(AS[st]+4*m+2*h, 2)}, v{BA+m} offset:{(j % 4)*12288 + 192*(16*ks + 4*h)}", ('A', st, m))
        def rB(cb):
            return lambda: a.lds(f"ds_read_b128 {v(BS[st]+4*cb, 4)}, v{BB+sx} offset:{(i % 2)*16384 + 4096*cb}", ('B', st, cb))
        return [rA(0, 0), rA(0, 1), rB(0), rB(1), rA(1, 0), rA(1, 1), rA(2, 0), rA(2, 1)]
    def mfmas(st, fill):
        k = 0
        for m in range(3):
            for cb in range(2):
                a.wait_lg(('A', st, m), ('B', st, cb))
                a(f"v_mfma_f32_32x32x16_bf16 {v(acc(m,cb),16)}, {v(AS[st]+4*m,4)}, {v(BS[st]+4*cb,4)}, {v(acc(m,cb),16)}")
                for f_ in fill[k]: f_()
                k += 1
    for ii in range(4): dmaX(0, ii)
    for ii in range(3): dmaW(0, ii)
    if split_prologue:
        for r in range(96): a(f"v_mov_b32 v{ACC+r}, 0")
        if split_prologue > 1: a(f"s_sleep {split_prologue}")
    for ii in range(3): dmaW(1, ii)
    for ii in range(4): dmaX(1, ii)
    for ii in range(3): dmaW(2, ii)
    for ii in range(3): dmaW(3, ii)
    if prefetch:
        G = prefetch; per = 128 // G
        P = T
        a("s_lshl_b32 s48, s6, 1")
        a("s_add_u32 s48, s48, s27")
        a("s_mul_i32 s48, s48, 30720")
        a("s_and_b32 s49, s5, 3")
        a("s_mul_i32 s49, s49, 768")
        a("s_add_u32 s48, s48, s49")
        a("s_mov_b32 s49, 43691")
        a(f"v_mul_u32_u24 v{P}, s49, v{LANE}")
        a(f"v_lshrrev_b32 v{P}, 18, v{P}")
        a(f"v_mul_u32_u24 v{P+1}, 6, v{P}")
        a(f"v_sub_u32 v{P+1}, v{LANE}, v{P+1}")
        a(f"v_mul_u32_u24 v{P}, 3072, v{P}")
        a(f"v_lshl_add_u32 v{P}, v{P+1}, 7, v{P}")
        for q in range(per):
            a.vmem(f"buffer_load_dword v{P+2}, v{P}, s[12:15], s48 offen offset:{G*q}", 'pf')
        a("s_lshl_b32 s48, s6, 2")
        a("s_add_u32 s48, s48, s4")
        a(f"v_lshlrev_b32 v{P+3}, 7, v{LANE}")
        for rnd in range(2):
            if rnd:
                a("s_add_u32 s48, s48, 128")
                a("s_cmp_ge_u32 s48, 160")
                a("s_cselect_b32 s48, 159, s48")
            a("s_lshl_b32 s49, s48, 13")
            a("s_lshr_b32 s51, s5, 2")
            a(f"s_mul_i32 s51, s51, {1024*1280}")
            a("s_add_u32 s50, s49, s51")
            for q in range(per):
                a.vmem(f"buffer_load_dword v{P+4+rnd}, v{P+3}, s[8:11], s50 offen offset:{G*q}", 'pf')
    if 'after_prologue' in hooks: hooks['after_prologue']()
    if not split_prologue:
        for r in range(96): a(f"v_mov_b32 v{ACC+r}, 0")
    a.wait_vm(('X', 0), ('W', 0))
    st.stamp()
    a("s_barrier")
    for f_ in reads(0, 0, 0): f_()
    NS = 20
    def spread(items, nslots=6, first=0):
        out = [[] for _ in range(nslots)]
        n = len(items)
        for q, it in enumerate(items):
            out[min(nslots - 1, first + q * (nslots - first) // max(n, 1))].append(it)
        return out
    for j in range(NS):
        R = reads(j, 1, 1)
        fill = [R[0:2], R[2:4], R[4:6], R[6:8], [], []]
        mfmas(0, fill)
        a.wait_lg_all()
        if fine is True and j % 2 == 1: st.stamp()
        wat = isinstance(fine, tuple) and j in fine
        if wat: st.stamp()
        if j + 1 < NS:
            tags = [('W', j + 1)]
            if j % 2 == 1: tags.append(('X', (j + 1) // 2))
            a.wait_vm(*tags)
            if wat: st.stamp(); a("s_waitcnt lgkmcnt(0)")
            a("s_barrier")
            if wat: st.stamp(); a("s_waitcnt lgkmcnt(0)")
            dm = []
            if j % 2 == 1 and (j + 1) // 2 + 1 < 10:
                dm += [(lambda i=(j + 1) // 2 + 1, ii=ii: dmaX(i, ii)) for ii in range(4)]
            if j + 4 < NS:
                dm += [(lambda jj=j + 4, ii=ii: dmaW(jj, ii)) for ii in range(3)]
            R = reads(j + 1, 0, 0)
            fill = [R[0:2], R[2:4], R[4:6], R[6:8], [], []]
            dsp = spread(dm, 6)
            fill = [dsp[q] + fill[q] if q < 2 else fill[q] + dsp[q] for q in range(6)]
            mfmas(1, fill)
        else:
            mfmas(1, [[] for _ in range(6)])
    if not isinstance(fine, tuple): st.stamp()
    if 'after_main' in hooks: hooks['after_main']()
    a("s_mov_b32 s38, 0xbfb8aa3b")
    a("s_mov_b32 s39, 0xbfb8aa3b")
    a("s_mul_i32 s42, s41, 6")
    a("s_mul_i32 s43, s26, 3")
    a("s_add_u32 s42, s42, s43")
    a("s_lshl_b32 s43, s40, 3")
    a("s_lshl_b32 s44, s27, 2")
    a("s_add_u32 s43, s43, s44")
    for m in range(3):
        a(f"s_add_u32 s44, s42, {m}")
        a("s_lshr_b32 s45, s44, 1")
        a("s_and_b32 s44, s44, 1")
        a("s_lshl_b32 s44, s44, 9")
        for cb in range(2):
            g = acc(m, cb); u = g + 8
            O = T + 16 + 4 * ((2 * m + cb) % 2)
            for p in range(4):
                t0 = T + 4 * (p % 2) ;
                if pk_epi:
                    a(f"v_pk_mul_f32 {v(t0,2)}, {v(g+2*p,2)}, s[38:39]")
                    a(f"v_exp_f32 v{t0}, v{t0}")
                    a(f"v_exp_f32 v{t0+1}, v{t0+1}")
                    a(f"v_pk_mul_f32 {v(t0+2,2)}, {v(g+2*p,2)}, {v(u+2*p,2)}")
                    a(f"v_pk_add_f32 {v(t0,2)}, {v(t0,2)}, 1.0 op_sel_hi:[1,0]")
                    a(f"v_rcp_f32 v{t0}, v{t0}")
                    a(f"v_rcp_f32 v{t0+1}, v{t0+1}")
                    a(f"s_nop 0")
                    a(f"v_pk_mul_f32 {v(t0+2,2)}, {v(t0+2,2)}, {v(t0,2)}")
                else:
                    a(f"v_mul_f32 v{t0}, s38, v{g+2*p}")
                    a(f"v_mul_f32 v{t0+1}, s38, v{g+2*p+1}")
                    a(f"v_exp_f32 v{t0}, v{t0}")
                    a(f"v_exp_f32 v{t0+1}, v{t0+1}")
                    a(f"v_mul_f32 v{t0+2}, v{g+2*p}, v{u+2*p}")
                    a(f"v_mul_f32 v{t0+3}, v{g+2*p+1}, v{u+2*p+1}")
                    a(f"v_add_f32 v{t0}, 1.0, v{t0}")
                    a(f"v_add_f32 v{t0+1}, 1.0, v{t0+1}")
                    a(f"v_rcp_f32 v{t0}, v{t0}")
                    a(f"v_rcp_f32 v{t0+1}, v{t0+1}")
                    a(f"s_nop 0")
                    a(f"v_mul_f32 v{t0+2}, v{t0+2}, v{t0}")
                    a(f"v_mul_f32 v{t0+3}, v{t0+3}, v{t0+1}")
                a(f"v_cvt_pk_bf16_f32 v{O+p}, v{t0+2}, v{t0+3}")
            a(f"s_add_u32 s46, s43, {2*cb}")
            a("s_mul_i32 s46, s46, 48")
            a("s_add_u32 s46, s46, s45")
            a("s_lshl_b32 s46, s46, 10")
            a("s_add_u32 s46, s46, s44")
            a.vmem(f"buffer_store_dwordx4 {v(O,4)}, v{VH}, s[16:19], s46 offen {store_mods}", 'st')
    if 'after_stores' in hooks:
        st.stamp()
        hooks['after_stores']()
        return
    if not fine: st.stamp()
    a("s_waitcnt vmcnt(0)") if st.on else None
    if not fine: st.stamp()
    st.real()
    if st.on:
        a("s_lshl_b32 s47, s2, 2")
        a("s_add_u32 s47, s47, s4")
    st.flush(47)
    a("s_endpgm")
```

```python
from common import *
def ffn2(a, st=None, wait_flags=None, nslot=4, amode=False):
    st = st or Stamps(a, False)
    SLOT = 20480
    FA = 16
    FB = 56
    ACC = 104
    NB = 3
    a(f"s_load_dwordx2 s[32:33], s[0:1], {KA['ws']}")
    a(f"s_load_dwordx2 s[34:35], s[0:1], {KA['out']}")
    a("v_lshlrev_b32 v2, 4, v1")
    a("s_and_b32 s26, s4, 1")
    a("s_lshr_b32 s27, s4, 1")
    a(f"s_mul_i32 s28, s41, {48*5*1024}")
    a("s_mul_i32 s29, s4, 5120")
    a("s_add_u32 s28, s28, s29")
    a("s_lshl_b32 s30, s40, 2")
    a("s_lshl_b32 s31, s26, 1")
    a("s_add_u32 s30, s30, s31")
    a("s_mul_i32 s30, s30, 48")
    a("s_lshl_b32 s31, s27, 1")
    a("s_add_u32 s30, s30, s31")
    a("s_lshl_b32 s30, s30, 10")
    a("s_mul_i32 s31, s27, 10240")
    a("v_add_u32 v3, s31, v2")
    a(f"v_add_u32 v15, {2*SLOT}, v3")
    a("s_waitcnt lgkmcnt(0)")
    srd(a, 8, 32, 33, SZ_W2, WS_W2)
    srd(a, 12, 32, 33, SZ_H, WS_H)
    def dmaA(s_):
        for i in range(5):
            a(f"s_add_u32 m0, s29, {(s_ % nslot) * SLOT + 1024*i}")
            a(f"s_add_u32 s36, s28, {s_*20480 + 1024*i}")
            a.vmem("buffer_load_dwordx4 v2, s[8:11], s36 offen lds", ('A', s_))
    def ldB(s_):
        for e in range(2):
            for cb in range(2):
                a(f"s_add_u32 s37, s30, {(cb*48 + 4*s_ + e)*1024}")
                a.vmem(f"buffer_load_dwordx4 {v(FB + 16*(s_ % NB) + 8*e + 4*cb, 4)}, v2, s[12:15], s37 offen", ('B', s_))
    NS = 12
    for s_ in range(nslot):
        dmaA(s_)
        if s_ < NB - 1: ldB(s_)
    for r in range(40): a(f"v_mov_b32 v{ACC+r}, 0")
    def rdA(s_, e, st_):
        sl = s_ % nslot
        base, off = ('v3', sl * SLOT) if sl < 2 else ('v15', (sl - 2) * SLOT)
        return [(lambda i=i: a.lds(f"ds_read_b128 {v(FA+20*st_+4*i,4)}, {base} offset:{off + e*5120 + 1024*i}", ('a', st_, i))) for i in range(5)]
    def mf(s_, e, st_, fill):
        k = 0
        for i in range(5):
            for cb in range(2):
                a.wait_lg(('a', st_, i))
                acc = ACC + 4 * (5 * cb + i)
                a(f"v_mfma_f32_16x16x32_bf16 {v(acc,4)}, {v(FA+20*st_+4*i,4)}, {v(FB+16*(s_ % NB)+8*e+4*cb,4)}, {v(acc,4)}")
                for f_ in fill.get(k, []): f_()
                k += 1
    a.wait_vm(('A', 0), ('B', 0))
    st.stamp()
    a("s_barrier")
    for f_ in rdA(0, 0, 0): f_()
    for s_ in range(NS):
        R = rdA(s_, 1, 1)
        mf(s_, 0, 0, {0: R[0:1], 1: R[1:2], 2: R[2:3], 3: R[3:4], 4: R[4:5]})
        a.wait_lg_all()
        if s_ + 1 < NS:
            a.wait_vm(('A', s_ + 1))
            a("s_barrier")
            fill = {}
            R = rdA(s_ + 1, 0, 0)
            for i in range(5): fill.setdefault(i, []).append(R[i])
            def later(s2=s_):
                if s2 + nslot < NS: dmaA(s2 + nslot)
            fill.setdefault(5, []).append(later)
            a.wait_vm(('B', s_))
            mf(s_, 1, 1, fill)
            if s_ + NB - 1 < NS: ldB(s_ + NB - 1)
            a.wait_vm(('B', s_ + 1))
        else:
            mf(s_, 1, 1, {})
    st.stamp()
    a("s_barrier")
    a("s_lshl_b32 s36, s4, 13")
    a("v_add_u32 v4, s36, v2")
    a("s_xor_b32 s37, s4, 2")
    a("s_lshl_b32 s37, s37, 13")
    a("v_add_u32 v5, s37, v2")
    a("s_cmp_eq_u32 s27, 0")
    a("s_cbranch_scc1 L_f2_k0")
    a("s_nop 7")
    for i in range(5): a(f"ds_write_b128 v4, {v(ACC+4*i,4)} offset:{1024*i}")
    for r in range(20): a(f"v_mov_b32 v{ACC+r}, v{ACC+20+r}")
    a("s_branch L_f2_join")
    a.label("L_f2_k0")
    a("s_nop 7")
    for i in range(5): a(f"ds_write_b128 v4, {v(ACC+20+4*i,4)} offset:{1024*i}")
    a.label("L_f2_join")
    a("s_waitcnt lgkmcnt(0)")
    a("s_barrier")
    RX = 16
    for i in range(5): a(f"ds_read_b128 {v(RX+4*i,4)}, v5 offset:{1024*i}")
    a("s_lshl_b32 s42, s40, 6")
    a("s_lshl_b32 s43, s26, 5")
    a("s_add_u32 s42, s42, s43")
    a("s_lshl_b32 s43, s27, 4")
    a("s_add_u32 s42, s42, s43")
    a("v_and_b32 v6, 15, v1")
    a("v_add_u32 v6, s42, v6")
    a("v_lshrrev_b32 v7, 4, v1")
    a("s_mul_i32 s43, s41, 80")
    a("v_lshlrev_b32 v8, 2, v7")
    a("v_add_u32 v8, s43, v8")
    a("v_lshlrev_b32 v9, 12, v8")
    a("v_lshl_add_u32 v9, v6, 1, v9")
    a("v_mul_u32_u24 v10, 1280, v6")
    a("v_lshl_add_u32 v10, v8, 1, v10")
    a("v_lshlrev_b32 v11, 2, v6")
    srd(a, 8, 32, 33, SZ_T1, WS_T1)
    srd(a, 16, 32, 33, SZ_G, WS_G)
    srd(a, 20, 34, 35, 2048 * 1280)
    if wait_flags: wait_flags(a)
    a.reset_counts()
    a.vmem("buffer_load_dword v12, v11, s[16:19], 0 offen", 'g')
    TL = 56
    ld_mod = 'sc1' if wait_flags else ''
    for i in range(5):
        a(f"s_mov_b32 s44, {16*4096*i}")
        for r in range(4):
            if r == 0: a.vmem(f"buffer_load_ushort v{TL+4*i+r}, v9, s[8:11], s44 offen {ld_mod}", ('t', i))
            else:
                a(f"s_add_u32 s44, s44, 4096")
                a.vmem(f"buffer_load_ushort v{TL+4*i+r}, v9, s[8:11], s44 offen {ld_mod}", ('t', i))
    a("s_waitcnt lgkmcnt(0)")
    for r in range(20): a(f"v_add_f32 v{ACC+r}, v{ACC+r}, v{RX+r}")
    a.wait_vm('g')
    a("v_mov_b32 v14, v12")
    a("v_sub_f32 v12, 1.0, v12")
    a("v_cvt_pk_bf16_f32 v12, v12, v12")
    a("v_lshlrev_b32 v12, 16, v12")
    a("s_mov_b32 s48, 0xffff0000")
    for i in range(5):
        a.wait_vm(('t', i))
        y = ACC + 4 * i; T = 80 + 8 * (i % 2); tl = TL + 4 * i
        a(f"v_cvt_pk_bf16_f32 v{T}, v{y}, v{y+1}")
        a(f"v_cvt_pk_bf16_f32 v{T+1}, v{y+2}, v{y+3}")
        for h in range(2):
            a(f"v_lshlrev_b32 v{T+2}, 16, v{T+h}")
            a(f"v_and_b32 v{T+3}, s48, v{T+h}")
            a(f"v_mul_f32 v{T+2}, v12, v{T+2}")
            a(f"v_mul_f32 v{T+3}, v12, v{T+3}")
            a(f"v_cvt_pk_bf16_f32 v{T+2}, v{T+2}, v{T+3}")
            a(f"v_and_b32 v{T+3}, s48, v{T+2}")
            a(f"v_lshlrev_b32 v{T+2}, 16, v{T+2}")
            a(f"v_lshlrev_b32 v{tl+2*h}, 16, v{tl+2*h}")
            a(f"v_lshlrev_b32 v{tl+2*h+1}, 16, v{tl+2*h+1}")
            if amode:
                a(f"v_mul_f32 v{tl+2*h}, v14, v{tl+2*h}")
                a(f"v_mul_f32 v{tl+2*h+1}, v14, v{tl+2*h+1}")
                a(f"v_cvt_pk_bf16_f32 v{tl+2*h}, v{tl+2*h}, v{tl+2*h+1}")
                a(f"v_and_b32 v{tl+2*h+1}, s48, v{tl+2*h}")
                a(f"v_lshlrev_b32 v{tl+2*h}, 16, v{tl+2*h}")
            a(f"v_add_f32 v{T+2}, v{T+2}, v{tl+2*h}")
            a(f"v_add_f32 v{T+3}, v{T+3}, v{tl+2*h+1}")
            a(f"v_cvt_pk_bf16_f32 v{T+4+h}, v{T+2}, v{T+3}")
        a.vmem(f"buffer_store_dwordx2 {v(T+4,2)}, v10, s[20:23], 0 offen offset:{32*i}", 'st')

def wait_t1_flags(a):
    lab = a.newlabel('L_poll'); done = a.newlabel('L_polled')
    srd(a, 24, 32, 33, SZ_FL, WS_FL)
    a("s_mul_i32 s49, s41, 320")
    a("v_lshlrev_b32 v13, 3, v1")
    a("s_mov_b32 s50, 0")
    a("s_mov_b32 exec_hi, 0xff")
    a.label(lab)
    a("buffer_load_dwordx2 v[94:95], v13, s[24:27], s49 offen sc1")
    a("s_waitcnt vmcnt(0)")
    a("v_min_u32 v94, v94, v95")
    a("v_cmp_eq_u32 vcc, 0, v94")
    a("s_nop 1")
    a(f"s_cbranch_vccz {done}")
    a("s_add_u32 s50, s50, 1")
    a("s_cmp_lt_u32 s50, 0x4000")
    a(f"s_cbranch_scc0 {done}")
    a("s_sleep 1")
    a(f"s_branch {lab}")
    a.label(done)
    a("s_mov_b64 exec, -1")
```

```python
from common import *
import sync
def poll_async(a, sbase, soff, nwords, vdst, vaddr, tag):
    wide = nwords > 64; nl = nwords // 2 if wide else nwords
    mask = (1 << nl) - 1
    a(f"v_lshlrev_b32 v{vaddr}, {3 if wide else 2}, v1")
    a(f"s_mov_b32 exec_lo, {hex(mask & 0xffffffff)}")
    a(f"s_mov_b32 exec_hi, {hex(mask >> 32)}")
    if wide: a.vmem(f"buffer_load_dwordx2 v[{vdst}:{vdst+1}], v{vaddr}, s[{sbase}:{sbase+3}], s{soff} offen sc1", tag)
    else: a.vmem(f"buffer_load_dword v{vdst}, v{vaddr}, s[{sbase}:{sbase+3}], s{soff} offen sc1", tag)
    a("s_mov_b64 exec, -1")
def poll_check(a, sbase, soff, nwords, vdst, tag):
    wide = nwords > 64; nl = nwords // 2 if wide else nwords
    mask = (1 << nl) - 1
    lab = a.newlabel('L_flags_ok')
    a.wait_vm(tag)
    a(f"s_mov_b32 exec_lo, {hex(mask & 0xffffffff)}")
    a(f"s_mov_b32 exec_hi, {hex(mask >> 32)}")
    a(f"v_cmp_ne_u32 vcc, s{sync.NONCE}, v{vdst}")
    if wide:
        a(f"v_cmp_ne_u32 s[56:57], s{sync.NONCE}, v{vdst+1}")
        a("s_nop 1")
        a("s_or_b64 vcc, vcc, s[56:57]")
    a("s_mov_b64 exec, -1")
    a("s_cmp_eq_u64 vcc, 0")
    a(f"s_cbranch_scc1 {lab}")
    keep = (list(a.vm), list(a.lg))
    sync.wait_flags(a, sbase, soff, nwords)
    a.label(lab)
    a.vm, a.lg = keep

def ffn2s(a, st, hflag_sreg, nslot=4, early_slots=4, poll_at=(7, 9), rot=3, one_poller=True, h_sleep=4):
    SLOT = 20480
    FA = 16; FB = 56; ACC = 104; NB = 3
    EP = 144
    NS = 12
    a("s_lshr_b32 s40, s5, 1")
    a("s_lshl_b32 s40, s40, 3")
    a("s_and_b32 s7, s6, 7")
    a("s_add_u32 s40, s40, s7")
    a("s_and_b32 s41, s5, 1")
    a("s_lshl_b32 s41, s41, 2")
    a("s_lshr_b32 s7, s6, 3")
    a("s_add_u32 s41, s41, s7")
    a("v_lshlrev_b32 v2, 4, v1")
    a("s_and_b32 s26, s4, 1")
    a("s_lshr_b32 s27, s4, 1")
    a(f"s_mul_i32 s28, s41, {48*5*1024}")
    a("s_mul_i32 s29, s4, 5120")
    a("s_add_u32 s28, s28, s29")
    a("s_lshl_b32 s30, s40, 2")
    a("s_lshl_b32 s31, s26, 1")
    a("s_add_u32 s30, s30, s31")
    a("s_mul_i32 s30, s30, 48")
    a("s_lshl_b32 s31, s27, 1")
    a("s_add_u32 s30, s30, s31")
    a("s_lshl_b32 s30, s30, 10")
    a("s_mul_i32 s31, s27, 10240")
    a("v_add_u32 v3, s31, v2")
    a(f"v_add_u32 v15, {2*SLOT}, v3")
    srd(a, 8, 32, 33, SZ_W2, WS_W2)
    srd(a, 12, 32, 33, SZ_H, WS_H)
    if rot > 1:
        a("s_and_b32 s62, s6, 7")
        a("s_lshr_b32 s63, s6, 3")
        a("s_add_u32 s62, s62, s63")
        a(f"s_mul_i32 s63, s62, {(65536 + rot - 1) // rot}")
        a("s_lshr_b32 s63, s63, 16")
        a(f"s_mul_i32 s63, s63, {rot}")
        a("s_sub_u32 s62, s62, s63")
        a(f"s_mul_i32 s62, s62, {12 // rot}")
        a("s_lshl_b32 s63, s62, 12")
        a("s_mul_i32 s62, s62, 20480")
    else:
        a("s_mov_b32 s62, 0"); a("s_mov_b32 s63, 0")
    def dmaA(s_):
        a("s_add_u32 s36, s28, s62")
        a("s_add_u32 s62, s62, 20480")
        a(f"s_cmp_ge_u32 s62, {12*20480}")
        a("s_cselect_b32 s62, 0, s62")
        for i in range(5):
            a(f"s_add_u32 m0, s29, {(s_ % nslot) * SLOT + 1024*i}")
            if i: a("s_add_u32 s36, s36, 1024")
            else: a("s_nop 0")
            a.vmem("buffer_load_dwordx4 v2, s[8:11], s36 offen sc1 lds", ('A', s_))
    def ldB(s_):
        a("s_add_u32 s37, s30, s63")
        a("s_add_u32 s63, s63, 4096")
        a(f"s_cmp_ge_u32 s63, {48*1024}")
        a("s_cselect_b32 s63, 0, s63")
        for e in range(2):
            for cb in range(2):
                a(f"s_add_u32 s38, s37, {(cb*48 + e)*1024}")
                a.vmem(f"buffer_load_dwordx4 {v(FB + 16*(s_ % NB) + 8*e + 4*cb, 4)}, v2, s[12:15], s38 offen sc1", ('B', s_))
    a.wait_vm('st')
    a("s_barrier")
    a("s_cmp_eq_u32 s4, 0")
    lab = a.newlabel('L_noflag')
    a(f"s_cbranch_scc0 {lab}")
    a("v_mov_b32 v250, 0")
    a(f"v_mov_b32 v251, s{sync.NONCE}")
    a("s_mov_b64 exec, 1")
    a(f"buffer_store_dword v251, v250, s[20:23], s{hflag_sreg} offen sc1")
    a("s_mov_b64 exec, -1")
    a.label(lab)
    st.stamp()
    poll_check(a, 20, 51, 48, 252, 'w2fl')
    for s_ in range(early_slots): dmaA(s_)
    a("s_lshr_b32 s50, s40, 1")
    a("s_lshl_b32 s50, s50, 6")
    a(f"s_add_u32 s50, s50, {sync.FL_H}")
    if one_poller:
        lab = a.newlabel('L_hpolled')
        a("s_cmp_eq_u32 s4, 0")
        a(f"s_cbranch_scc0 {lab}")
        sync.wait_flags(a, 20, 50, 16, sleep=h_sleep)
        a.label(lab)
        a("s_barrier")
        a.vm = [t for t in a.vm]
        keepA = [('A', s_) for s_ in range(early_slots) for _ in range(5)]
        a.vm = keepA; a.lg = []
    else:
        sync.wait_flags(a, 20, 50, 16)
        a.reset_counts()
    st.stamp()
    for s_ in range(NB - 1): ldB(s_)
    for s_ in range(early_slots, nslot): dmaA(s_)
    for r in range(40): a(f"v_mov_b32 v{ACC+r}, 0")
    a("s_lshl_b32 s42, s40, 6")
    a("s_lshl_b32 s43, s26, 5")
    a("s_add_u32 s42, s42, s43")
    a("s_lshl_b32 s43, s27, 4")
    a("s_add_u32 s42, s42, s43")
    a("v_and_b32 v6, 15, v1")
    a("v_add_u32 v6, s42, v6")
    a("v_lshrrev_b32 v7, 4, v1")
    a("s_mul_i32 s43, s41, 80")
    a("v_lshlrev_b32 v8, 2, v7")
    a("v_add_u32 v8, s43, v8")
    a("v_lshlrev_b32 v9, 12, v8")
    a("v_lshl_add_u32 v9, v6, 1, v9")
    a("v_mul_u32_u24 v10, 1280, v6")
    a("v_lshl_add_u32 v10, v8, 1, v10")
    a("v_lshlrev_b32 v11, 2, v6")
    a(f"s_load_dwordx2 s[34:35], s[0:1], {KA['out']}")
    a("s_mul_i32 s48, s41, 320")
    a(f"s_add_u32 s48, s48, {sync.FL_A}")
    a("s_lshl_b32 s49, s40, 4")
    a(f"s_add_u32 s49, s49, {sync.FL_G}")
    a("s_waitcnt lgkmcnt(0)")
    srd(a, 44, 34, 35, 2048 * 1280)
    def rdA(s_, e, st_):
        sl = s_ % nslot
        base, off = ('v3', sl * SLOT) if sl < 2 else ('v15', (sl - 2) * SLOT)
        return [(lambda i=i: a.lds(f"ds_read_b128 {v(FA+20*st_+4*i,4)}, {base} offset:{off + e*5120 + 1024*i}", ('a', st_, i))) for i in range(5)]
    def mf(s_, e, st_, fill):
        k = 0
        for i in range(5):
            for cb in range(2):
                a.wait_lg(('a', st_, i))
                acc = ACC + 4 * (5 * cb + i)
                a(f"v_mfma_f32_16x16x32_bf16 {v(acc,4)}, {v(FA+20*st_+4*i,4)}, {v(FB+16*(s_ % NB)+8*e+4*cb,4)}, {v(acc,4)}")
                for f_ in fill.get(k, []): f_()
                k += 1
    def ep_loads():
        srd(a, 16, 32, 33, SZ_T1, WS_T1)
        srd(a, 52, 32, 33, SZ_G, WS_G)
        a.vmem(f"buffer_load_dword v{EP+20}, v11, s[52:55], 0 offen sc1", 'g')
        for i in range(5):
            for r in range(4):
                a(f"s_mov_b32 s39, {(16*i + r)*4096}")
                a.vmem(f"buffer_load_ushort v{EP+4*i+r}, v9, s[16:19], s39 offen sc1", ('t', i))
    a.wait_vm(('A', 0), ('B', 0))
    st.stamp()
    a("s_barrier")
    for f_ in rdA(0, 0, 0): f_()
    for s_ in range(NS):
        R = rdA(s_, 1, 1)
        mf(s_, 0, 0, {0: R[0:1], 1: R[1:2], 2: R[2:3], 3: R[3:4], 4: R[4:5]})
        a.wait_lg_all()
        if s_ + 1 < NS:
            a.wait_vm(('A', s_ + 1))
            a("s_barrier")
            fill = {}
            R = rdA(s_ + 1, 0, 0)
            for i in range(5): fill.setdefault(i, []).append(R[i])
            def later(s2=s_):
                if s2 + nslot < NS: dmaA(s2 + nslot)
            fill.setdefault(5, []).append(later)
            mf(s_, 1, 1, fill)
            if s_ + NB - 1 < NS: ldB(s_ + NB - 1)
            if s_ == poll_at[0]:
                poll_async(a, 20, 48, 80, 252, 248, 'afl')
                poll_async(a, 20, 49, 4, 254, 249, 'gfl')
            if s_ == poll_at[1]:
                poll_check(a, 20, 48, 80, 252, 'afl')
                poll_check(a, 20, 49, 4, 254, 'gfl')
                ep_loads()
            a.wait_vm(('B', s_ + 1))
        else:
            mf(s_, 1, 1, {})
    st.stamp()
    a("s_barrier")
    a("s_lshl_b32 s36, s4, 13")
    a("v_add_u32 v4, s36, v2")
    a("s_xor_b32 s37, s4, 2")
    a("s_lshl_b32 s37, s37, 13")
    a("v_add_u32 v5, s37, v2")
    l0 = a.newlabel('L_f2_k0'); lj = a.newlabel('L_f2_join')
    a("s_cmp_eq_u32 s27, 0")
    a(f"s_cbranch_scc1 {l0}")
    a("s_nop 7")
    for i in range(5): a(f"ds_write_b128 v4, {v(ACC+4*i,4)} offset:{1024*i}")
    for r in range(20): a(f"v_mov_b32 v{ACC+r}, v{ACC+20+r}")
    a(f"s_branch {lj}")
    a.label(l0)
    a("s_nop 7")
    for i in range(5): a(f"ds_write_b128 v4, {v(ACC+20+4*i,4)} offset:{1024*i}")
    a.label(lj)
    a("s_waitcnt lgkmcnt(0)")
    a("s_barrier")
    RX = 16
    for i in range(5): a(f"ds_read_b128 {v(RX+4*i,4)}, v5 offset:{1024*i}")
    a.wait_vm('g')
    a(f"v_sub_f32 v12, 1.0, v{EP+20}")
    a("v_cvt_pk_bf16_f32 v12, v12, v12")
    a("v_lshlrev_b32 v12, 16, v12")
    a("s_mov_b32 s48, 0xffff0000")
    a("s_waitcnt lgkmcnt(0)")
    for r in range(20): a(f"v_add_f32 v{ACC+r}, v{ACC+r}, v{RX+r}")
    for i in range(5):
        a.wait_vm(('t', i))
        y = ACC + 4 * i; T = 56 + 12 * (i % 2); tl = EP + 4 * i
        a(f"v_cvt_pk_bf16_f32 v{T}, v{y}, v{y+1}")
        a(f"v_cvt_pk_bf16_f32 v{T+1}, v{y+2}, v{y+3}")
        for r in range(4): a(f"v_lshlrev_b32 v{tl+r}, 16, v{tl+r}")
        a(f"v_lshlrev_b32 v{T+2}, 16, v{T}")
        a(f"v_and_b32 v{T+3}, s48, v{T}")
        a(f"v_lshlrev_b32 v{T+4}, 16, v{T+1}")
        a(f"v_and_b32 v{T+5}, s48, v{T+1}")
        for r in range(4): a(f"v_mul_f32 v{tl+r}, v{EP+20}, v{tl+r}")
        for r in range(4): a(f"v_mul_f32 v{T+2+r}, v12, v{T+2+r}")
        a(f"v_cvt_pk_bf16_f32 v{T+6}, v{tl}, v{tl+1}")
        a(f"v_cvt_pk_bf16_f32 v{T+7}, v{tl+2}, v{tl+3}")
        a(f"v_cvt_pk_bf16_f32 v{T+8}, v{T+2}, v{T+3}")
        a(f"v_cvt_pk_bf16_f32 v{T+9}, v{T+4}, v{T+5}")
        a(f"v_lshlrev_b32 v{tl}, 16, v{T+6}")
        a(f"v_and_b32 v{tl+1}, s48, v{T+6}")
        a(f"v_lshlrev_b32 v{tl+2}, 16, v{T+7}")
        a(f"v_and_b32 v{tl+3}, s48, v{T+7}")
        a(f"v_lshlrev_b32 v{T+2}, 16, v{T+8}")
        a(f"v_and_b32 v{T+3}, s48, v{T+8}")
        a(f"v_lshlrev_b32 v{T+4}, 16, v{T+9}")
        a(f"v_and_b32 v{T+5}, s48, v{T+9}")
        for r in range(4): a(f"v_add_f32 v{T+2+r}, v{T+2+r}, v{tl+r}")
        a(f"v_cvt_pk_bf16_f32 v{T+10}, v{T+2}, v{T+3}")
        a(f"v_cvt_pk_bf16_f32 v{T+11}, v{T+4}, v{T+5}")
        a.vmem(f"buffer_store_dwordx2 {v(T+10,2)}, v10, s[44:47], 0 offen offset:{32*i}", 'st')
```

```python
import sys, os
sys.path.insert(0, os.path.dirname(__file__))
from common import *
import k0, k12, kS
NAME = 'gated_mix__ssm_conv_s4__swiglu_ffn__prompt'
def header(launches):
    ref = open('cdna_kernels/' + NAME + '.s.ref').read().split('\n')
    out = []
    for ln in ref:
        if ln.startswith('; Override launch') or ln.startswith('; grid=ceil') or ln.startswith('; @launch') : continue
        if not ln.startswith(';'): break
        out.append(ln)
    for k, g, b, lds in launches:
        out.append(f"; @launch kernel={k} grid=({g},1,1) block=({b},1,1) lds={lds}")
    out.append('.amdgcn_target "amdgcn-amd-amdhsa--gfx950"')
    out.append('.text')
    return '\n'.join(out) + '\n'
def relabel(lines, suf):
    return lines
def build3(diag=False):
    ks = []
    l0, _ = k0.kernel0('k0', diag=diag)
    l1, _ = k12.kernel_conv(diag=diag)
    l2, _ = k12.kernel_ffn2(diag=diag)
    ks = [('mix_a_kernel', l0, 512, 81920), ('mix_b_kernel', l1, 160, 53248), ('mix_c_kernel', l2, 256, 81920)]
    txt = header([(n, g, 256, lds) for n, l, g, lds in ks])
    for n, l, g, lds in ks:
        txt += head(n) + '\n'.join(l) + '\n' + kd(n, sgpr=100 if diag else 64)
    return txt, ks
def build2(diag=False, k0kw={}, k12kw={}):
    l0, _ = k0.kernel0('k0', diag=diag, **k0kw)
    l1, _ = k12.kernel12(diag=diag, **k12kw)
    ks = [('mix_a_kernel', l0, 512, 81920), ('mix_b_kernel', l1, 512, 81920)]
    txt = header([(n, g, 256, lds) for n, l, g, lds in ks])
    for n, l, g, lds in ks:
        txt += head(n) + '\n'.join(l) + '\n' + kd(n, sgpr=100 if diag else 64)
    return txt, ks
def buildT(diag=False, akw={}, bkw={}):
    l0, _ = kS.kernelA(diag=diag, **akw)
    l1, _ = kS.kernelB(diag=diag, **bkw)
    ks = [('mix_a_kernel', l0, 512, 81920), ('mix_b_kernel', l1, 256, 81920)]
    txt = header([(n, g, 256, lds) for n, l, g, lds in ks])
    for n, l, g, lds in ks:
        txt += head(n) + '\n'.join(l) + '\n' + kd(n, sgpr=100)
    return txt, ks
def buildS(diag=False, kw={}):
    l0, _ = kS.kernelS(diag=diag, **kw)
    ks = [(NAME + '_kernel', l0, 512, 81920)]
    txt = header([]).replace('.amdgcn_target', '; @launch grid=(512,1,1) block=(256,1,1) lds=81920\n.amdgcn_target')
    for n, l, g, lds in ks:
        txt += head(n) + '\n'.join(l) + '\n' + kd(n, sgpr=100)
    return txt, ks
if __name__ == '__main__':
    mode = os.environ.get('MODE', 'S')
    kw = eval(os.environ.get('KW', '{}'))
    dbg = int(os.environ.get('DBG', '0'))
    if dbg:
        import common
        common.DBG_STAMPS = dbg
    if mode == 'S': txt, ks = buildS(diag=bool(dbg), kw=kw)
    elif mode == 'T': txt, ks = buildT(akw=kw)
    else: txt, ks = {'3': build3, '2': build2}[mode]()
    out = sys.argv[1] if len(sys.argv) > 1 else 'cdna_kernels/' + NAME + '.s'
    open(out, 'w').write(txt)
    print('wrote', out, len(txt), 'bytes')
```

```python
from common import *
from ffn1 import ffn1
import side, ssm
def role_decode(a, nwg, only=None):
    a(f"s_cmp_ge_u32 s2, {nwg}")
    a("s_cbranch_scc1 L_exit0")
    a("v_lshrrev_b32 v1, 6, v0")
    a("s_nop 0")
    a("v_readfirstlane_b32 s4, v1")
def kernel0_ffn1_only(name, diag=False, **kw):
    a = Asm()
    st = Stamps(a, diag)
    st.real(); st.stamp()
    role_decode(a, 256)
    a("s_and_b32 s5, s2, 7")
    a("s_lshr_b32 s6, s2, 3")
    a("s_lshr_b32 s40, s5, 2")
    a("s_lshl_b32 s40, s40, 3")
    a("s_and_b32 s7, s6, 7")
    a("s_add_u32 s40, s40, s7")
    a("s_and_b32 s41, s5, 3")
    a("s_lshl_b32 s41, s41, 2")
    a("s_lshr_b32 s7, s6, 3")
    a("s_add_u32 s41, s41, s7")
    ffn1(a, st=st, **kw)
    a.label("L_exit0")
    a("s_endpgm")
    rep = []
    lines, n = fix_hazards(a.lines, rep)
    return lines, rep
def kernel0(name, diag=False, roles='both', prefetch=True, sm='sc1', prio=None, fine=False):
    a = Asm()
    st = Stamps(a, diag)
    role_decode(a, 512)
    st.real(); st.stamp()
    a("s_and_b32 s5, s2, 7")
    a("s_lshr_b32 s7, s2, 3")
    a("s_lshr_b32 s3, s7, 5")
    a("s_xor_b32 s6, s7, s3")
    a("s_and_b32 s34, s6, 1")
    a("s_and_b32 s6, s7, 31")
    a("s_lshr_b32 s6, s6, 1")
    a("s_lshl_b32 s3, s3, 4")
    a("s_or_b32 s6, s6, s3")
    a("s_cmp_eq_u32 s34, 1")
    a("s_cbranch_scc1 L_side")
    if roles in ('both', 'ffn1'):
        a("s_lshr_b32 s40, s5, 2")
        a("s_lshl_b32 s40, s40, 3")
        a("s_and_b32 s7, s6, 7")
        a("s_add_u32 s40, s40, s7")
        a("s_and_b32 s41, s5, 3")
        a("s_lshl_b32 s41, s41, 2")
        a("s_lshr_b32 s7, s6, 3")
        a("s_add_u32 s41, s41, s7")
        ffn1(a, st=st, store_mods=sm, prio=prio, fine=fine)
    a("s_endpgm")
    a.label("L_side")
    a.reset_counts()
    if roles in ('both', 'side'):
        st2 = Stamps(a, diag); st2.n = 2
        a("v_and_b32 v1, 63, v0")
        if prefetch: side.prefetch_ffn1(a)
        a.reset_counts()
        st2.stamp()
        if diag: a("s_mov_b32 s70, s68")
        a("s_cmp_ge_u32 s6, 20")
        a("s_cbranch_scc1 L_tasks")
        a("s_mul_i32 s40, s5, 20")
        a("s_add_u32 s40, s40, s6")
        a("s_lshl_b32 s40, s40, 2")
        a("s_add_u32 s40, s40, s4")
        a(f"s_mul_i32 s43, s4, {ssm.KG_STRIDE}")
        ssm.kgen_core(a)
        st2.stamp()
        ssm.kgen_store_tab(a, sm=sm)
        a("s_branch L_side_end")
        a.label("L_tasks"); a.reset_counts()
        a("s_sub_u32 s7, s6, 20")
        a("s_lshl_b32 s7, s7, 2")
        a("s_add_u32 s7, s7, s4")
        a("s_cmp_ge_u32 s7, 36")
        a("s_cbranch_scc1 L_t3")
        a("s_cmp_ge_u32 s7, 20")
        a("s_cbranch_scc1 L_t2")
        a("s_and_b32 s40, s5, 3")
        a("s_mul_i32 s40, s40, 20")
        a("s_add_u32 s7, s7, s40")
        a("s_mul_i32 s40, s7, 6554")
        a("s_lshr_b32 s40, s40, 16")
        a("s_mul_i32 s41, s40, 10")
        a("s_sub_u32 s41, s7, s41")
        a("s_lshr_b32 s3, s5, 2")
        a("s_lshl_b32 s3, s3, 3")
        a("s_add_u32 s40, s40, s3")
        side.t1(a, sm=sm)
        a("s_branch L_side_end")
        a.label("L_t2"); a.reset_counts()
        a("s_sub_u32 s7, s7, 20")
        a("s_lshl_b32 s40, s7, 4")
        a("s_lshl_b32 s3, s5, 8")
        a("s_add_u32 s40, s40, s3")
        side.t2(a, sm=sm)
        a("s_cmp_eq_u32 s40, 0")
        a("s_cbranch_scc0 L_side_end")
        a("s_mov_b64 exec, -1")
        srd(a, 8, 32, 33, SZ_FL, WS_FL)
        a("v_lshlrev_b32 v2, 4, v1")
        for r in range(4): a(f"v_mov_b32 v{4+r}, 0")
        for i in range(3): a(f"buffer_store_dwordx4 v[4:7], v2, s[8:11], 0 offen offset:{1024*i} {sm}")
        a("s_branch L_side_end")
        a.label("L_t3"); a.reset_counts()
        a("s_sub_u32 s7, s7, 36")
        a("s_mul_i32 s3, s5, 12")
        a("s_add_u32 s7, s7, s3")
        a("s_lshr_b32 s40, s7, 1")
        a("s_and_b32 s41, s7, 1")
        side.t3(a, sm=sm)
        a.label("L_side_end")
        if diag:
            st2.n = 4
            a("s_waitcnt vmcnt(0)")
            st2.stamp(); st2.real()
            a("s_lshl_b32 s47, s2, 2")
            a("s_add_u32 s47, s47, s4")
            st2.flush(47)
    a.label("L_exit0")
    a("s_endpgm")
    rep = []
    lines, n = fix_hazards(a.lines, rep)
    return lines, rep
if __name__ == '__main__':
    lines, rep = kernel0('k')
    print(len(lines), 'lines', len(rep), 'nops')
    for r in rep[:40]: print(r)
```

```python
from common import *
from conv import conv
from ffn2 import ffn2, wait_t1_flags
import ssm
def prologue(a, nwg, exitlab):
    a(f"s_cmp_ge_u32 s2, {nwg}")
    a(f"s_cbranch_scc1 {exitlab}")
    a("v_lshrrev_b32 v1, 6, v0")
    a("s_nop 0")
    a("v_readfirstlane_b32 s4, v1")
    a("v_and_b32 v1, 63, v0")
def flush(a, st):
    if st.on:
        a("s_waitcnt vmcnt(0)")
        st.stamp(); st.real()
        a("s_lshl_b32 s47, s2, 2")
        a("s_add_u32 s47, s47, s4")
        st.flush(47)
def kernel_conv(diag=False, sm='sc1'):
    a = Asm(); st = Stamps(a, diag)
    prologue(a, 160, "L_exit1")
    st.real(); st.stamp()
    a("s_lshl_b32 s40, s2, 2")
    a("s_add_u32 s40, s40, s4")
    conv(a, sm=sm, st=st)
    flush(a, st)
    a.label("L_exit1"); a("s_endpgm")
    rep = []; lines, n = fix_hazards(a.lines, rep)
    return lines, rep
def kernel_ffn2(diag=False):
    a = Asm(); st = Stamps(a, diag)
    prologue(a, 256, "L_exit2")
    st.real(); st.stamp()
    a("s_and_b32 s5, s2, 7")
    a("s_lshr_b32 s6, s2, 3")
    a("s_lshr_b32 s40, s5, 1")
    a("s_lshl_b32 s40, s40, 3")
    a("s_and_b32 s7, s6, 7")
    a("s_add_u32 s40, s40, s7")
    a("s_and_b32 s41, s5, 1")
    a("s_lshl_b32 s41, s41, 2")
    a("s_lshr_b32 s7, s6, 3")
    a("s_add_u32 s41, s41, s7")
    ffn2(a, st=st)
    flush(a, st)
    a.label("L_exit2"); a("s_endpgm")
    rep = []; lines, n = fix_hazards(a.lines, rep)
    return lines, rep
if __name__ == '__main__':
    for f in (kernel_conv, kernel_ffn2):
        lines, rep = f()
        print(f.__name__, len(lines), len(rep))
        for r in rep:
            if 'lds' not in r[1]: print('   ', r)

def kernel12(diag=False, sm='sc1', prio_conv=None, prio_ffn=None, nconv=214):
    a = Asm(); st = Stamps(a, diag)
    NW = 256 + nconv
    prologue(a, 512, "L_exit12")
    st.real(); st.stamp()
    a("s_and_b32 s5, s2, 7")
    a("s_lshr_b32 s7, s2, 3")
    a("s_lshr_b32 s3, s7, 5")
    a("s_xor_b32 s6, s7, s3")
    a("s_and_b32 s34, s6, 1")
    a("s_and_b32 s6, s7, 31")
    a("s_lshr_b32 s6, s6, 1")
    a("s_lshl_b32 s3, s3, 4")
    a("s_or_b32 s6, s6, s3")
    a("s_cmp_eq_u32 s34, 1")
    a("s_cbranch_scc1 L_conv")
    a("s_lshr_b32 s40, s5, 1")
    a("s_lshl_b32 s40, s40, 3")
    a("s_and_b32 s7, s6, 7")
    a("s_add_u32 s40, s40, s7")
    a("s_and_b32 s41, s5, 1")
    a("s_lshl_b32 s41, s41, 2")
    a("s_lshr_b32 s7, s6, 3")
    a("s_add_u32 s41, s41, s7")
    if prio_ffn is not None: a(f"s_setprio {prio_ffn}")
    ffn2(a, st=st, wait_flags=wait_t1_flags)
    flush(a, st)
    a("s_endpgm")
    a.label("L_conv"); a.reset_counts()
    st2 = Stamps(a, diag); st2.n = 2
    a("s_lshl_b32 s40, s6, 3")
    a("s_add_u32 s40, s40, s5")
    a("s_mul_i32 s40, s40, 3")
    a("s_add_u32 s40, s40, s4")
    a("s_cmp_ge_u32 s4, 3")
    a("s_cbranch_scc1 L_exit12")
    a("s_cmp_ge_u32 s40, 640")
    a("s_cbranch_scc1 L_exit12")
    a(f"s_mul_i32 s43, s4, {ssm.CV_STRIDE}")
    if prio_conv is not None: a(f"s_setprio {prio_conv}")
    ssm.conv2(a, sm=sm, st=st2)
    flush(a, st2)
    a.label("L_exit12"); a("s_endpgm")
    rep = []; lines, n = fix_hazards(a.lines, rep)
    return lines, rep
```

```python
from common import *
from ffn1 import ffn1
from ffn2 import ffn2
import ffn2s
import side, ssm2, sync, chan
SCRAMBLE = 0
def decode(a, exitlab):
    a("s_cmp_ge_u32 s2, 512")
    a(f"s_cbranch_scc1 {exitlab}")
    if SCRAMBLE:
        a("s_lshr_b32 s3, s2, 3"); a("s_and_b32 s3, s3, 7"); a("s_xor_b32 s2, s2, s3")
        a("s_and_b32 s3, s2, 7"); a("s_lshl_b32 s3, s3, 3"); a("s_and_b32 s3, s3, 0x28"); a("s_xor_b32 s2, s2, s3")
    a("v_lshrrev_b32 v1, 6, v0")
    a("s_nop 0")
    a("v_readfirstlane_b32 s4, v1")
    a("s_and_b32 s5, s2, 7")
    a("s_lshr_b32 s7, s2, 3")
    a("s_lshr_b32 s3, s7, 5")
    a("s_xor_b32 s6, s7, s3")
    a("s_and_b32 s34, s6, 1")
    a("s_and_b32 s6, s7, 31")
    a("s_lshr_b32 s6, s6, 1")
    a("s_lshl_b32 s3, s3, 4")
    a("s_or_b32 s6, s6, s3")
def fin(a, st):
    if st.on:
        a("s_waitcnt vmcnt(0)")
        st.stamp(); st.real()
        a("s_lshl_b32 s47, s2, 2")
        a("s_add_u32 s47, s47, s4")
        st.flush(47)
def ssm_role(a, diag, sm, single, prio_ch=None, late_prio=None, nt_params=True, abl='', nt_t1=False):
    a("v_and_b32 v1, 63, v0")
    a("s_lshl_b32 s40, s6, 3")
    a("s_add_u32 s40, s40, s5")
    a("s_cmp_ge_u32 s6, 16")
    a("s_cbranch_scc1 L_typeB")
    a("s_cmp_eq_u32 s4, 3")
    a("s_cbranch_scc1 L_taskA")
    a("s_mul_i32 s40, s40, 3")
    a("s_add_u32 s40, s40, s4")
    a("s_branch L_chan")
    a.label("L_typeB")
    a("s_cmp_ge_u32 s4, 2")
    a("s_cbranch_scc1 L_taskB")
    a("s_sub_u32 s40, s40, 128")
    a("s_lshl_b32 s40, s40, 1")
    a("s_add_u32 s40, s40, s4")
    a("s_add_u32 s40, s40, 384")
    a.label("L_chan")
    if 'nochan' in abl: a("s_endpgm")
    st = Stamps(a, diag); st.n = 2
    a(f"s_mul_i32 s43, s4, {chan.CV_STRIDE}")
    if prio_ch is not None: a(f"s_setprio {prio_ch}")
    chan.channel_wave(a, sm=sm, st=st, flag_out=single, late_prio=late_prio, nt_params=nt_params, abl=abl)
    fin(a, st)
    a("s_endpgm")
    def t1_ids(mreg):
        a("s_and_b32 s40, s5, 3")
        a("s_mul_i32 s40, s40, 40")
        a(f"s_add_u32 s7, s{mreg}, s40")
        a("s_mul_i32 s40, s7, 6554")
        a("s_lshr_b32 s40, s40, 16")
        a("s_mul_i32 s41, s40, 10")
        a("s_sub_u32 s41, s7, s41")
        a("s_lshr_b32 s3, s5, 2")
        a("s_lshl_b32 s3, s3, 4")
        a("s_add_u32 s40, s40, s3")
    def t3_ids(nreg):
        a("s_mul_i32 s7, s5, 24")
        a(f"s_add_u32 s7, s7, s{nreg}")
        a("s_lshr_b32 s40, s7, 2")
        a("s_and_b32 s41, s7, 3")
    a.label("L_taskA"); a.reset_counts()
    if 'notask' in abl: a("s_endpgm")
    st = Stamps(a, diag); st.n = 2
    a(f"s_mov_b32 s43, {chan.TASK_LDS}")
    t3_ids(6)
    ssm2.t3q_touch(a)
    a("s_mov_b32 s42, s6")
    t1_ids(42)
    chan.t1s(a, 43, sm=sm, st=st, nt=nt_t1)
    a.reset_counts()
    st.stamp()
    t3_ids(6)
    ssm2.t3q(a, 43, sm=sm, flag=single, nt=False)
    fin(a, st)
    a("s_endpgm")
    a.label("L_taskB"); a.reset_counts()
    if 'notask' in abl: a("s_endpgm")
    st = Stamps(a, diag); st.n = 2
    a("s_sub_u32 s43, s4, 2")
    a("s_mul_i32 s43, s43, 17152")
    a(f"s_add_u32 s43, s43, {2*chan.CV_STRIDE}")
    a("s_add_u32 s42, s6, 16")
    a("s_cmp_eq_u32 s4, 2")
    a("s_cselect_b32 s42, s6, s42")
    a("s_cmp_ge_u32 s42, 40")
    a("s_cbranch_scc1 L_taskB_pack")
    t1_ids(42)
    chan.t1s(a, 43, sm=sm, st=st, nt=nt_t1)
    a.reset_counts()
    st.stamp()
    a("s_cmp_eq_u32 s4, 2")
    a("s_cbranch_scc0 L_taskB_end")
    a("s_sub_u32 s40, s6, 16")
    a("s_lshl_b32 s40, s40, 4")
    a("s_lshl_b32 s3, s5, 8")
    a("s_add_u32 s40, s40, s3")
    side.t2(a, sm=sm, flag=single)
    a("s_branch L_taskB_end")
    a.label("L_taskB_pack"); a.reset_counts()
    if diag:
        a("s_waitcnt lgkmcnt(0)")
        for k_ in range(2, 5): a(f"s_mov_b32 s{STAMP_BASE+2*k_}, s{STAMP_BASE+2}")
    a("s_sub_u32 s54, s6, 8")
    t3_ids(54)
    ssm2.t3q(a, 43, sm=sm, flag=single, nt=True, want_nonce=single)
    a.label("L_taskB_end")
    st.n = 5
    fin(a, st)
def ffn1_ids(a):
    a("s_lshr_b32 s40, s5, 2")
    a("s_lshl_b32 s40, s40, 3")
    a("s_and_b32 s7, s6, 7")
    a("s_add_u32 s40, s40, s7")
    a("s_and_b32 s41, s5, 3")
    a("s_lshl_b32 s41, s41, 2")
    a("s_lshr_b32 s7, s6, 3")
    a("s_add_u32 s41, s41, s7")
def ffn2_ids(a):
    a("s_lshr_b32 s40, s5, 1")
    a("s_lshl_b32 s40, s40, 3")
    a("s_and_b32 s7, s6, 7")
    a("s_add_u32 s40, s40, s7")
    a("s_and_b32 s41, s5, 1")
    a("s_lshl_b32 s41, s41, 2")
    a("s_lshr_b32 s7, s6, 3")
    a("s_add_u32 s41, s41, s7")
def nonce_writer(a):
    a("s_or_b32 s3, s5, s6")
    a("s_or_b32 s3, s3, s4")
    a("s_cmp_eq_u32 s3, 0")
    a("s_cbranch_scc0 L_nonw")
    sync.publish_nonce(a)
    a.label("L_nonw")
def kernelA(diag=False, sm='sc1', prio=None, prio_ch=None, late_prio=None, noffn=False, rot=3, nt_params=True):
    a = Asm(); st = Stamps(a, diag)
    decode(a, "L_exit")
    st.real(); st.stamp()
    a("s_cmp_eq_u32 s34, 1")
    a("s_cbranch_scc1 L_ssm")
    nonce_writer(a)
    if noffn: a("s_endpgm")
    ffn1_ids(a)
    ffn1(a, st=st, store_mods=sm, prio=prio, rot=rot)
    a.label("L_ssm"); a.reset_counts()
    ssm_role(a, diag, sm, False, prio_ch=prio_ch, late_prio=late_prio, nt_params=nt_params)
    a.label("L_exit"); a("s_endpgm")
    rep = []; lines, n = fix_hazards(a.lines, rep)
    return lines, rep
def kernelB(diag=False):
    a = Asm(); st = Stamps(a, diag)
    a("s_cmp_ge_u32 s2, 256")
    a("s_cbranch_scc1 L_exitB")
    a("v_lshrrev_b32 v1, 6, v0")
    a("s_nop 0")
    a("v_readfirstlane_b32 s4, v1")
    a("v_and_b32 v1, 63, v0")
    st.real(); st.stamp()
    a("s_and_b32 s5, s2, 7")
    a("s_lshr_b32 s6, s2, 3")
    ffn2_ids(a)
    ffn2(a, st=st, amode=True)
    fin(a, st)
    a.label("L_exitB"); a("s_endpgm")
    rep = []; lines, n = fix_hazards(a.lines, rep)
    return lines, rep

def kernelS(diag=False, sm='sc1', prio=None, prio_ch=None, late_prio=None, rot=3, nt_params=True, early_slots=4, poll_at=(7, 9), prio2=None, rot2=1, split_prologue=1, one_poller=True, abl='', nt_t1=False, ntw=True, ut_sleep=8, use_pk=False, h_sleep=4, pk_epi=False, scramble=0):
    global SCRAMBLE
    SCRAMBLE = scramble
    chan.UT_SLEEP = ut_sleep; chan.USE_PK = use_pk
    a = Asm(); st = Stamps(a, diag)
    decode(a, "L_exit")
    st.real(); st.stamp()
    a("s_cmp_eq_u32 s34, 1")
    a("s_cbranch_scc1 L_ssm")
    nonce_writer(a)
    ffn1_ids(a)
    def after_prologue():
        a(f"s_load_dwordx2 s[60:61], s[0:1], {KA['dbg']}")
        a(f"s_load_dwordx2 s[32:33], s[0:1], {KA['ws']}")
        a("v_mov_b32 v250, 0")
        a("s_waitcnt lgkmcnt(0)")
        a.vmem("global_load_dword v251, v250, s[60:61] sc1", 'nonce')
    def after_main():
        lab = a.newlabel('L_ffn_nonce')
        a.wait_vm('nonce')
        a(f"v_readfirstlane_b32 s{sync.NONCE}, v251")
        a(f"s_cmp_lg_u32 s{sync.NONCE}, 0")
        a(f"s_cbranch_scc1 {lab}")
        keep = (list(a.vm), list(a.lg))
        sync.get_nonce(a)
        a.label(lab)
        a.vm, a.lg = keep
        sync.flag_srd(a, 20, 32, 33)
        a("s_lshl_b32 s50, s40, 4")
        a("s_add_u32 s50, s50, s41")
        a("s_lshl_b32 s50, s50, 2")
        a(f"s_add_u32 s49, s50, {sync.FL_H}")
        a("s_and_b32 s51, s5, 1")
        a("s_lshl_b32 s51, s51, 2")
        a("s_lshr_b32 s7, s6, 3")
        a("s_add_u32 s51, s51, s7")
        a("s_lshr_b32 s51, s51, 1")
        a("s_mul_i32 s51, s51, 192")
        a(f"s_add_u32 s51, s51, {sync.FL_W2}")
        ffn2s.poll_async(a, 20, 51, 48, 252, 248, 'w2fl')
    def after_stores():
        if prio2 is not None: a(f"s_setprio {prio2}")
        ffn2s.ffn2s(a, st, 49, early_slots=early_slots, poll_at=poll_at, rot=rot2, one_poller=one_poller, h_sleep=h_sleep)
        fin(a, st)
        a("s_endpgm")
    ffn1(a, st=st, store_mods=sm, prio=prio, rot=rot, split_prologue=split_prologue, ntw=ntw, pk_epi=pk_epi, hooks=dict(after_prologue=after_prologue, after_main=after_main, after_stores=after_stores))
    a.label("L_ssm"); a.reset_counts()
    ssm_role(a, diag, sm, True, prio_ch=prio_ch, late_prio=late_prio, nt_params=nt_params, abl=abl, nt_t1=nt_t1)
    a.label("L_exit"); a("s_endpgm")
    rep = []; lines, n = fix_hazards(a.lines, rep)
    return lines, rep
```

```python
from common import *
L2E = 0x3fb8aa3b; L2E_LO = 0x32a57060; LN2 = 0x3f317218

def cmul(a, dst, x, w, tmp):
    a(f"v_pk_mul_f32 {v(tmp,2)}, {v(x,2)}, {v(w,2)} op_sel:[0,0] op_sel_hi:[0,1]")
    a(f"v_pk_fma_f32 {v(dst,2)}, {v(x,2)}, {v(w,2)}, {v(tmp,2)} op_sel:[1,1,0] op_sel_hi:[1,0,1] neg_lo:[0,1,0]")

KG_STRIDE = 14464; KG_Y = 272 * 21
def kgen(a, sm='sc1', st=None):
    st = st or Stamps(a, False)
    P = 8
    ACC = 64
    a(f"s_load_dwordx16 s[16:31], s[0:1], {KA['Are']}")
    a(f"s_load_dwordx2 s[32:33], s[0:1], {KA['ws']}")
    a("s_mul_i32 s41, s40, 384")
    a("v_lshlrev_b32 v2, 1, v1")
    a("v_add_u32 v2, s41, v2")
    a("s_lshl_b32 s42, s40, 1")
    a("v_mov_b32 v4, s42")
    a(f"s_mul_i32 s43, s4, {KG_STRIDE}")
    a("v_lshlrev_b32 v5, 2, v1")
    a("v_add_u32 v5, s43, v5")
    a("v_and_b32 v6, 31, v1")
    a("v_mul_u32_u24 v6, 272, v6")
    a("v_lshrrev_b32 v7, 5, v1")
    a("v_lshl_add_u32 v6, v7, 4, v6")
    a("v_add_u32 v6, s43, v6")
    a("s_waitcnt lgkmcnt(0)")
    a.vmem("global_load_ushort v3, v4, s[28:29]", 'ldt')
    for ch in range(3):
        for t in range(6):
            a.vmem(f"global_load_ushort v{P+6*ch+t}, v2, s[{16+2*t}:{17+2*t}] offset:{128*ch}", ('p', ch))
    for r in range(16): a(f"v_mov_b32 v{ACC+r}, 0")
    a(f"s_mov_b32 s44, {hex(L2E)}")
    a(f"s_mov_b32 s45, {hex(L2E_LO)}")
    a(f"s_mov_b32 s46, {hex(LN2)}")
    a.wait_vm('ldt')
    a("v_lshlrev_b32 v3, 16, v3")
    a("v_mul_f32 v26, s44, v3")
    a("v_fma_f32 v27, v3, s44, -v26")
    a("v_fma_f32 v27, v3, s45, v27")
    a("v_exp_f32 v26, v26")
    a("v_mul_f32 v27, s46, v27")
    a("v_fma_f32 v26, v26, v27, v26")
    a("v_cvt_pk_bf16_f32 v3, v26, v26")
    a("v_lshlrev_b32 v3, 16, v3")
    C = 28; W1 = 30; W2 = 32; W4 = 34; W8 = 36; W256 = 38; X = 40; Y = 42; XB = 44; TMP = 46; TMP2 = 48; T = 50; O = 56
    FA = 80; FB = 84
    def seed(dst, scale):
        if scale == 1.0:
            a(f"v_exp_f32 v{T}, v{T+4}")
            a(f"v_rndne_f32 v{T+2}, v{T+5}")
            a(f"v_sub_f32 v{T+1}, v{T+5}, v{T+2}")
        else:
            lit = hex(int.from_bytes(__import__('struct').pack('<f', scale), 'little'))
            a(f"v_mul_f32 v{T}, {lit}, v{T+4}")
            a(f"v_mul_f32 v{T+1}, {lit}, v{T+5}")
            a(f"v_exp_f32 v{T}, v{T}")
            a(f"v_rndne_f32 v{T+2}, v{T+1}")
            a(f"v_sub_f32 v{T+1}, v{T+1}, v{T+2}")
        a(f"v_cos_f32 v{T+2}, v{T+1}")
        a(f"v_sin_f32 v{T+3}, v{T+1}")
        a("s_nop 0")
        a(f"v_mul_f32 v{dst}, v{T}, v{T+2}")
        a(f"v_mul_f32 v{dst+1}, v{T}, v{T+3}")
    on = [0]
    def put(row_off, pair, neg):
        o = O + (on[0] % 4); on[0] += 1
        a(f"v_cvt_pk_bf16_f32 v{o}, v{pair}, {'-' if neg else ''}v{pair+1}")
        a.lds(f"ds_write_b32 v5, v{o} offset:{row_off}", 'w')
    for ch in range(3):
        p = P + 6 * ch
        a.wait_vm(('p', ch))
        for t in range(6): a(f"v_lshlrev_b32 v{p+t}, 16, v{p+t}")
        a(f"v_mul_f32 v{T+4}, v3, v{p}")
        a(f"v_mul_f32 v{T+5}, v3, v{p+1}")
        a(f"v_mul_f32 v{p+2}, v3, v{p+2}")
        a(f"v_mul_f32 v{p+3}, v3, v{p+3}")
        a(f"v_mul_f32 v{T+4}, s44, v{T+4}")
        a(f"v_mul_f32 v{T+5}, 0.15915494, v{T+5}")
        a(f"v_mul_f32 v{C}, v{p+4}, v{p+2}")
        a(f"v_mul_f32 v{C+1}, v{p+4}, v{p+3}")
        a(f"v_fma_f32 v{C}, -v{p+5}, v{p+3}, v{C}")
        a(f"v_fma_f32 v{C+1}, v{p+5}, v{p+2}, v{C+1}")
        seed(W1, 1.0); seed(W8, 8.0); seed(W256, 256.0)
        cmul(a, W2, W1, W1, TMP)
        cmul(a, W4, W2, W2, TMP)
        xs = []
        xs.append(('put', C, 0))
        prev = C
        for i in range(1, 8): xs.append(('mul', X, prev, W1, i)); prev = X
        xs.append(('mul', XB, C, W256, 8))
        prev = XB
        for i in range(9, 12): xs.append(('mul', X, prev, W2, i)); prev = X
        xs.append(('mul', XB, XB, W256, 12))
        xs.append(('mul', X, XB, W4, 13))
        xs.append(('mul', XB, XB, W256, 14))
        xs.append(('mul', X, XB, W4, 15))
        for i in range(16, 21): xs.append(('mul', XB, XB, W256, i))
        ys = []
        for b in range(32):
            if b == 0: ys.append(('one',))
            elif b == 1: ys.append(('put', W8, 1))
            elif b == 2: ys.append(('mul', Y, W8, W8, 2))
            else: ys.append(('mul', Y, Y, W8, b))
        def do(step, isx):
            off = lambda r: 272 * r + (0 if isx else KG_Y)
            if step[0] == 'one':
                if ch == 0:
                    a(f"v_mov_b32 v{O+4}, 0x3f80")
                    a.lds(f"ds_write_b32 v5, v{O+4} offset:{off(0)}", 'w')
            elif step[0] == 'put': put(off(step[2]), step[1], isx)
            else:
                _, dst, src, w, row = step
                cmul(a, dst, src, w, TMP if isx else TMP2)
                put(off(row), dst, isx)
        ix = iy = 0
        while ix < len(xs) or iy < len(ys):
            if iy < len(ys): do(ys[iy], False); iy += 1
            if ix < len(xs) and (iy * len(xs) >= ix * len(ys) or iy >= len(ys)): do(xs[ix], True); ix += 1
        def rd(s_):
            b = FA + 8 * (s_ % 2)
            a.lds(f"ds_read_b128 {v(b,4)}, v6 offset:{32*s_}", ('fa', s_))
            a.lds(f"ds_read_b128 {v(b+4,4)}, v6 offset:{KG_Y + 32*s_}", ('fb', s_))
        rd(0)
        for s_ in range(8):
            if s_ + 1 < 8: rd(s_ + 1)
            a.wait_lg(('fa', s_), ('fb', s_))
            b = FA + 8 * (s_ % 2)
            a(f"v_mfma_f32_32x32x16_bf16 {v(ACC,16)}, {v(b,4)}, {v(b+4,4)}, {v(ACC,16)}")
    st.stamp()
    a("s_add_u32 s47, s43, 16")
    a("v_and_b32 v8, 31, v1")
    a("v_lshrrev_b32 v9, 5, v1")
    a("v_cmp_eq_u32 s[48:49], 1, v9")
    a("v_lshlrev_b32 v10, 5, v8")
    a("v_lshl_add_u32 v10, v9, 4, v10")
    a("v_add_u32 v10, s47, v10")
    a("v_lshlrev_b32 v11, 4, v8")
    a("v_add_u32 v11, 1024, v11")
    a("v_lshlrev_b32 v12, 3, v8")
    a("v_add_u32 v13, 1536, v12")
    a("v_add_u32 v14, 1792, v12")
    a("v_add_u32 v15, 8, v11")
    a("v_cndmask_b32 v13, v11, v13, s[48:49]")
    a("v_cndmask_b32 v14, v15, v14, s[48:49]")
    a("v_add_u32 v13, s47, v13")
    a("v_add_u32 v14, s47, v14")
    a("v_lshlrev_b32 v15, 2, v8")
    a("v_lshl_add_u32 v15, v9, 9, v15")
    a("v_add_u32 v15, 2048, v15")
    a("v_add_u32 v15, s47, v15")
    a("v_mov_b32 v16, 0")
    a("v_mov_b32 v17, s47")
    a("v_add_u32 v17, -4, v17")
    a.lds(f"ds_write_b128 v10, {v(ACC,4)}", 'w')
    a.lds(f"ds_write_b64 v13, {v(ACC+4,2)}", 'w')
    a.lds(f"ds_write_b64 v14, {v(ACC+6,2)}", 'w')
    for r in range(4): a.lds(f"ds_write_b32 v15, v{ACC+8+r} offset:{128*r}", 'w')
    a.lds("ds_write_b32 v17, v16", 'w')
    srd(a, 36, 32, 33, SZ_KV, WS_KV)
    a(f"s_mul_i32 s50, s40, {KV_CH}")
    a(f"v_mul_u32_u24 v18, {KV_ROW}, v9")
    a("v_lshl_add_u32 v19, v8, 4, v18")
    a("v_and_b32 v20, 3, v8")
    a("v_lshl_add_u32 v20, v20, 4, v18")
    a("v_add_u32 v19, 64, v19")
    for r in range(4): a(f"v_mov_b32 v{24+r}, 0")
    a.vmem(f"buffer_store_dwordx4 v[24:27], v20, s[36:39], s50 offen {sm}", 'st')
    lvv = 21
    a(f"v_lshlrev_b32 v{lvv}, 2, v9")
    R = 28; OUT = [44, 48]
    on2 = [0]
    def out_store(ps):
        o = OUT[on2[0] % 2]; on2[0] += 1
        return o, (lambda: a.vmem(f"buffer_store_dwordx4 {v(o,4)}, v19, s[36:39], s50 offen offset:{512*ps} {sm}", 'st'))
    a("v_lshlrev_b32 v22, 5, v8")
    a("v_add_u32 v22, s47, v22")
    a(f"v_sub_u32 v22, v22, v{lvv}")
    for e in range(4): a.lds(f"ds_read2_b32 {v(R+2*e,2)}, v22 offset0:{2*e} offset1:{2*e+1}", 'r')
    a.wait_lg('r')
    o, stf = out_store(0)
    for e in range(4): a(f"v_cvt_pk_bf16_f32 v{o+e}, v{R+2*e}, v{R+2*e+1}")
    stf()
    a("v_lshlrev_b32 v22, 4, v8")
    a("v_add_u32 v22, s47, v22")
    a("v_add_u32 v22, 1024, v22")
    a(f"v_sub_u32 v23, v22, v{lvv}")
    a("v_cmp_eq_u32 vcc, 32, v1")
    a("v_add_u32 v36, -4, v22")
    a("v_cndmask_b32 v36, v22, v36, vcc")
    a.lds(f"ds_read2_b32 {v(R,2)}, v23 offset0:1 offset1:2", 'r')
    a.lds(f"ds_read2_b32 {v(R+2,2)}, v23 offset0:3 offset1:4", 'r')
    a.lds(f"ds_read2_b32 {v(R+4,2)}, v22 offset0:0 offset1:2", 'r')
    a.lds(f"ds_read_b32 v{R+6}, v36", 'r')
    a.wait_lg('r')
    o, stf = out_store(1)
    a(f"v_cvt_pk_bf16_f32 v{o}, v{R+6}, v{R+4}")
    a(f"v_cvt_pk_bf16_f32 v{o+1}, v{R}, v{R+1}")
    a(f"v_cvt_pk_bf16_f32 v{o+2}, v{R+5}, v{R+5}")
    a(f"v_cvt_pk_bf16_f32 v{o+3}, v{R+2}, v{R+3}")
    stf()
    a("v_lshlrev_b32 v22, 3, v8")
    a("v_add_u32 v22, s47, v22")
    a("v_add_u32 v22, 1536, v22")
    a(f"v_sub_u32 v23, v22, v{lvv}")
    for i in range(2):
        a.lds(f"ds_read2_b32 {v(R,2)}, v22 offset0:{64*i} offset1:{64*i+1}", 'r')
        a.lds(f"ds_read_b32 v{R+2}, v22 offset:{256*i+8}", 'r')
        a.lds(f"ds_read2_b32 {v(R+4,2)}, v23 offset0:{64*i+1} offset1:{64*i+2}", 'r')
        a.wait_lg('r')
        o, stf = out_store(2 + i)
        a(f"v_cvt_pk_bf16_f32 v{o}, v{R}, v{R}")
        a(f"v_cvt_pk_bf16_f32 v{o+1}, v{R}, v{R+4}")
        a(f"v_cvt_pk_bf16_f32 v{o+2}, v{R+1}, v{R+1}")
        a(f"v_cvt_pk_bf16_f32 v{o+3}, v{R+5}, v{R+2}")
        stf()
    a("v_lshlrev_b32 v22, 2, v8")
    a("v_add_u32 v22, s47, v22")
    a("v_add_u32 v22, 2048, v22")
    a("v_and_b32 v23, 1, v1")
    a("v_xor_b32 v36, 1, v9")
    a("v_and_b32 v36, v36, v23")
    a("v_cmp_eq_u32 s[52:53], 1, v36")
    a("v_xor_b32 v36, 1, v23")
    a("v_and_b32 v36, v36, v9")
    a("v_cmp_eq_u32 s[54:55], 1, v36")
    for i in range(4):
        a.lds(f"ds_read2_b32 {v(R,2)}, v22 offset0:{32*i} offset1:{32*i+1}", 'r')
        a.wait_lg('r')
        o, stf = out_store(4 + i)
        a(f"v_cndmask_b32 v{R+2}, v{R}, v{R+1}, s[52:53]")
        a(f"v_cndmask_b32 v{R+3}, v{R+1}, v{R}, s[54:55]")
        a(f"v_cvt_pk_bf16_f32 v{o}, v{R}, v{R}")
        a(f"v_cvt_pk_bf16_f32 v{o+1}, v{R}, v{R}")
        a(f"v_cvt_pk_bf16_f32 v{o+2}, v{R+2}, v{R+3}")
        a(f"v_cvt_pk_bf16_f32 v{o+3}, v{R+1}, v{R+1}")
        stf()

def t1(a, sm='sc1', flag=False, st=None):
    st = st or Stamps(a, False)
    a(f"s_load_dwordx2 s[8:9], s[0:1], {KA['u']}")
    a(f"s_load_dwordx2 s[32:33], s[0:1], {KA['ws']}")
    a("s_mul_i32 s43, s4, 20480")
    a("v_lshrrev_b32 v2, 3, v1")
    a("v_mul_u32_u24 v2, 1280, v2")
    a("v_and_b32 v3, 7, v1")
    a("v_lshl_add_u32 v2, v3, 4, v2")
    a(f"s_mul_i32 s44, s40, {128*1280}")
    a("s_lshl_b32 s45, s41, 7")
    a("s_add_u32 s44, s44, s45")
    a("s_waitcnt lgkmcnt(0)")
    srd(a, 8, 8, 9, 2048 * 1280)
    srd(a, 36, 32, 33, SZ_UT, WS_UT)
    for i in range(16):
        a(f"s_add_u32 m0, s43, {1024*i}")
        if i: a(f"s_add_u32 s44, s44, {8*1280}")
        else: a("s_nop 0")
        a.vmem("buffer_load_dwordx4 v2, s[8:11], s44 offen lds", 'x')
    a("v_lshrrev_b32 v4, 4, v1")
    a("v_bfe_u32 v5, v1, 2, 2")
    a("v_lshl_add_u32 v5, v4, 3, v5")
    a("v_lshlrev_b32 v5, 7, v5")
    a("v_and_b32 v6, 3, v1")
    a("v_lshl_add_u32 v5, v6, 3, v5")
    a("v_add_u32 v5, s43, v5")
    a("v_and_b32 v6, 15, v1")
    a("v_xor_b32 v7, v4, v6")
    a("s_add_u32 s48, s43, 16384")
    for q_ in range(4):
        a(f"v_xor_b32 v3, {4*q_}, v7")
        a("v_lshlrev_b32 v3, 4, v3")
        a(f"v_lshl_add_u32 v{56+q_}, v6, 8, v3")
        a(f"v_add_u32 v{56+q_}, s48, v{56+q_}")
        a(f"v_lshl_add_u32 v{60+q_}, v4, 8, v3")
        a(f"v_add_u32 v{60+q_}, s48, v{60+q_}")
        a(f"v_add_u32 v{60+q_}, {1024*q_}, v{60+q_}")
    a("v_lshlrev_b32 v6, 4, v6")
    a("v_lshl_add_u32 v6, v4, 12, v6")
    a("s_lshl_b32 s46, s41, 18")
    a("s_lshl_b32 s47, s40, 8")
    a("s_add_u32 s46, s46, s47")
    a.wait_vm('x')
    st.stamp()
    if flag:
        import sync
        sync.get_nonce(a)
    st.stamp()
    for dq in range(4):
        for tq in range(4):
            b = 8 + 4 * tq
            for h in range(2):
                a.lds(f"ds_read_b64_tr_b16 {v(b+2*h,2)}, v5 offset:{(32*tq+4*h)*128 + 32*dq}", ('r', tq))
        for tq in range(4):
            a.wait_lg(('r', tq))
            a.lds(f"ds_write_b128 v{56+tq}, {v(8+4*tq,4)}", 'w')
        for stp in range(4):
            a.lds(f"ds_read_b128 {v(24+16*(dq%2)+4*stp,4)}, v{60+stp}", ('q', stp))
        for stp in range(4):
            a(f"s_add_u32 s47, s46, {(dq*16 + 4*stp)*4096}")
            a.wait_lg(('q', stp))
            a.vmem(f"buffer_store_dwordx4 {v(24+16*(dq%2)+4*stp,4)}, v6, s[36:39], s47 offen {sm}", 'st')
    st.stamp()
    if flag:
        import sync
        sync.flag_srd(a, 8, 32, 33)
        a("s_lshl_b32 s47, s41, 4")
        a("s_add_u32 s47, s47, s40")
        a("s_lshl_b32 s47, s47, 2")
        a(f"s_add_u32 s47, s47, {sync.FL_UT}")
        sync.set_flag(a, 8, 47)

def t3(a, sm='sc1'):
    a(f"s_load_dwordx2 s[8:9], s[0:1], {KA['wd']}")
    a(f"s_load_dwordx2 s[32:33], s[0:1], {KA['ws']}")
    a("s_mul_i32 s43, s4, 20480")
    a("v_lshlrev_b32 v2, 4, v1")
    a(f"s_mul_i32 s44, s40, {32*1280}")
    a("s_mul_i32 s45, s41, 640")
    a("s_add_u32 s44, s44, s45")
    a("s_waitcnt lgkmcnt(0)")
    srd(a, 8, 8, 9, 1536 * 1280)
    srd(a, 36, 32, 33, SZ_W2, WS_W2)
    a("s_mov_b32 exec_lo, -1")
    a("s_mov_b32 exec_hi, 0xff")
    for i in range(32):
        a(f"s_add_u32 m0, s43, {640*i}")
        if i: a("s_add_u32 s44, s44, 1280")
        else: a("s_nop 0")
        a.vmem("buffer_load_dwordx4 v2, s[8:11], s44 offen lds", 'x')
    a("s_mov_b64 exec, -1")
    a("v_lshrrev_b32 v4, 5, v1")
    a("v_lshlrev_b32 v4, 4, v4")
    a("v_bfe_u32 v5, v1, 4, 1")
    a("v_lshl_add_u32 v4, v5, 2, v4")
    a("v_bfe_u32 v5, v1, 2, 2")
    a("v_add_u32 v4, v4, v5")
    a("v_mul_u32_u24 v4, 640, v4")
    a("v_and_b32 v5, 3, v1")
    a("v_lshl_add_u32 v4, v5, 3, v4")
    a("v_add_u32 v4, s43, v4")
    a(f"s_mul_i32 s46, s41, {4*48*5*1024}")
    a(f"s_mul_i32 s47, s40, {5*1024}")
    a("s_add_u32 s46, s46, s47")
    a.wait_vm('x')
    n = 0
    for dti in range(4):
        for dt in range(5):
            b = 8 + 4 * (n % 4); n += 1
            for h in range(2):
                a.lds(f"ds_read_b64_tr_b16 {v(b+2*h,2)}, v4 offset:{2*(80*dti+16*dt) + 8*640*h}", 'r')
            a(f"s_add_u32 s47, s46, {(dti*48*5 + dt)*1024}")
            a.wait_lg('r')
            a.vmem(f"buffer_store_dwordx4 {v(b,4)}, v2, s[36:39], s47 offen {sm}", 'st')

def t2(a, sm='sc1', flag=False):
    a(f"s_load_dwordx2 s[8:9], s[0:1], {KA['u']}")
    a(f"s_load_dwordx2 s[12:13], s[0:1], {KA['gw']}")
    a(f"s_load_dwordx2 s[32:33], s[0:1], {KA['ws']}")
    a("v_lshlrev_b32 v2, 4, v1")
    a("v_lshlrev_b32 v3, 2, v1")
    a("v_add_u32 v3, 1024, v3")
    a("s_mul_i32 s44, s40, 1280")
    a("s_waitcnt lgkmcnt(0)")
    srd(a, 8, 8, 9, 2048 * 1280)
    srd(a, 12, 12, 13, 1280)
    srd(a, 36, 32, 33, SZ_G, WS_G)
    a.vmem("buffer_load_dwordx4 v[4:7], v2, s[12:15], 0 offen", 'gw')
    a.vmem("buffer_load_dword v8, v3, s[12:15], 0 offen", 'gw')
    XR = 16
    for r in range(16):
        a.vmem(f"buffer_load_dwordx4 {v(XR+8*r,4)}, v2, s[8:11], s44 offen", ('x', r))
        a.vmem(f"buffer_load_dword v{XR+8*r+4}, v3, s[8:11], s44 offen", ('x', r))
        if r < 15: a("s_add_u32 s44, s44, 1280")
    for r in range(16):
        a.wait_vm('gw', ('x', r))
        b = XR + 8 * r
        a(f"v_mov_b32 v{b+5}, 0")
        for e in range(5):
            a(f"v_dot2_f32_bf16 v{b+5}, v{b+e}, v{4+e}, v{b+5}")
    for sh, mask in (('row_shr:1', '0xf'), ('row_shr:2', '0xf'), ('row_shr:4', '0xf'), ('row_shr:8', '0xf'), ('row_bcast:15', '0xa'), ('row_bcast:31', '0xc')):
        for r in range(16):
            b = XR + 8 * r + 5
            a(f"v_add_f32_dpp v{b}, v{b}, v{b} {sh} row_mask:{mask} bank_mask:0xf")
    a("v_mov_b32 v9, 0")
    for r in range(16):
        a(f"v_readlane_b32 s{16+r}, v{XR+8*r+5}, 63")
    for r in range(16):
        a(f"v_writelane_b32 v9, s{16+r}, {r}")
    a("v_cvt_pk_bf16_f32 v9, v9, v9")
    a("v_lshlrev_b32 v9, 16, v9")
    a(f"v_mul_f32 v9, {hex(L2E | 0x80000000)}, v9")
    a("v_exp_f32 v9, v9")
    a("s_nop 0")
    a("v_add_f32 v9, 1.0, v9")
    a("v_rcp_f32 v9, v9")
    a("s_nop 0")
    a("v_cvt_pk_bf16_f32 v9, v9, v9")
    a("v_lshlrev_b32 v9, 16, v9")
    a("v_lshlrev_b32 v10, 2, v1")
    a("s_lshl_b32 s45, s40, 2")
    a("s_mov_b64 exec, 0xffff")
    a.vmem(f"buffer_store_dword v9, v10, s[36:39], s45 offen {sm}", 'st')
    a("s_mov_b64 exec, -1")
    if flag:
        import sync
        sync.flag_srd(a, 8, 32, 33)
        a("s_lshr_b32 s47, s40, 4")
        a("s_lshl_b32 s47, s47, 2")
        a(f"s_add_u32 s47, s47, {sync.FL_G}")
        sync.set_flag(a, 8, 47)

def prefetch_ffn1(a):
    a(f"s_load_dwordx2 s[8:9], s[0:1], {KA['u']}")
    a(f"s_load_dwordx4 s[20:23], s[0:1], {KA['wg']}")
    a("s_lshl_b32 s40, s6, 2")
    a("s_add_u32 s40, s40, s4")
    a("s_lshr_b32 s41, s5, 2")
    a("s_lshl_b32 s41, s41, 10")
    a("s_lshl_b32 s42, s40, 3")
    a("s_add_u32 s41, s41, s42")
    a("s_mul_i32 s41, s41, 1280")
    a("v_and_b32 v2, 7, v1")
    a("v_mul_u32_u24 v2, 1280, v2")
    a("v_bfe_u32 v3, v1, 3, 1")
    a("v_lshl_add_u32 v2, v3, 7, v2")
    a("s_and_b32 s42, s40, 63")
    a("s_mul_i32 s42, s42, 6144")
    a("s_and_b32 s43, s5, 3")
    a("s_mul_i32 s43, s43, 768")
    a("s_add_u32 s42, s42, s43")
    a("v_cmp_le_u32 vcc, 6, v1")
    a("v_mov_b32 v4, 0")
    a("v_mov_b32 v5, 2304")
    a("v_cndmask_b32 v4, v4, v5, vcc")
    a("v_lshl_add_u32 v3, v1, 7, v4")
    a("s_waitcnt lgkmcnt(0)")
    srd(a, 8, 8, 9, 2048 * 1280)
    a("s_cmp_lt_u32 s40, 64")
    a("s_cselect_b32 s12, s20, s22")
    a("s_cselect_b32 s13, s21, s23")
    a(f"s_mov_b32 s14, {640*3072}")
    a(f"s_mov_b32 s15, {hex(SRD3)}")
    for r in range(1, 5):
        a("s_mov_b64 exec, 0xfff")
        a(f"s_add_u32 s43, s42, {128*3072*r}")
        a(f"buffer_load_dword v248, v3, s[12:15], s43 offen")
        a("s_mov_b64 exec, 0xffff")
        a(f"s_add_u32 s43, s41, {256*r}")
        a(f"buffer_load_dword v249, v2, s[8:11], s43 offen")
    a("s_mov_b64 exec, -1")
```

```python
from common import *
import struct
L2E = 0x3fb8aa3b; L2E_LO = 0x32a57060; LN2 = 0x3f317218
def flit(x): return hex(int.from_bytes(struct.pack('<f', x), 'little'))
def cmul(a, dst, x, w, tmp):
    a(f"v_pk_mul_f32 {v(tmp,2)}, {v(x,2)}, {v(w,2)} op_sel:[0,0] op_sel_hi:[0,1]")
    a(f"v_pk_fma_f32 {v(dst,2)}, {v(x,2)}, {v(w,2)}, {v(tmp,2)} op_sel:[1,1,0] op_sel_hi:[1,0,1] neg_lo:[0,1,0]")
def cmul1(a, tmp, x, w): a(f"v_pk_mul_f32 {v(tmp,2)}, {v(x,2)}, {v(w,2)} op_sel:[0,0] op_sel_hi:[0,1]")
def cmul2(a, dst, x, w, tmp): a(f"v_pk_fma_f32 {v(dst,2)}, {v(x,2)}, {v(w,2)}, {v(tmp,2)} op_sel:[1,1,0] op_sel_hi:[1,0,1] neg_lo:[0,1,0]")

KG_STRIDE = 14464; KG_Y = 272 * 21
KG_ACC = 192
def kgen_core(a, pre=None, st=None):
    P = 8; ACC = KG_ACC; F = 128
    a(f"s_load_dwordx16 s[16:31], s[0:1], {KA['Are']}")
    a("s_mul_i32 s41, s40, 384")
    a("v_lshlrev_b32 v2, 1, v1")
    a("v_add_u32 v2, s41, v2")
    a("s_lshl_b32 s42, s40, 1")
    a("v_mov_b32 v4, s42")
    a("s_waitcnt lgkmcnt(0)")
    a.vmem("global_load_ushort v3, v4, s[28:29]", 'ldt')
    for ch in range(3):
        for t in range(6):
            a.vmem(f"global_load_ushort v{P+6*ch+t}, v2, s[{16+2*t}:{17+2*t}] offset:{128*ch}", ('p', ch))
    if pre: pre()
    a("v_and_b32 v6, 31, v1")
    a("v_mul_u32_u24 v6, 272, v6")
    a("v_lshrrev_b32 v7, 5, v1")
    a("v_lshl_add_u32 v6, v7, 4, v6")
    a("v_add_u32 v6, s43, v6")
    a("s_mov_b32 m0, s43")
    for r in range(16): a(f"v_mov_b32 v{ACC+r}, 0")
    a(f"s_mov_b32 s44, {hex(L2E)}")
    a(f"s_mov_b32 s45, {hex(L2E_LO)}")
    a(f"s_mov_b32 s46, {hex(LN2)}")
    a.wait_vm('ldt')
    if st: st.stamp()
    a("v_lshlrev_b32 v3, 16, v3")
    a("v_mul_f32 v26, s44, v3")
    a("v_fma_f32 v27, v3, s44, -v26")
    a("v_fma_f32 v27, v3, s45, v27")
    a("v_exp_f32 v26, v26")
    a("v_mul_f32 v27, s46, v27")
    a("v_fma_f32 v26, v26, v27, v26")
    a("v_cvt_pk_bf16_f32 v3, v26, v26")
    a("v_lshlrev_b32 v3, 16, v3")
    C = 28; W1 = 30; W2 = 32; W4 = 34; W8 = 36; W256 = 38; X = 40; XB = 42; YA = 44; YB = 46
    TX = 48; TA = 50; TB_ = 52; W128 = 54; T = 56; O = 76
    on = [0]
    def put(row_off, pair, neg):
        o = O + (on[0] % 6); on[0] += 1
        a(f"v_cvt_pk_bf16_f32 v{o}, v{pair}, {'-' if neg else ''}v{pair+1}")
        a.lds(f"ds_write_addtid_b32 v{o} offset:{row_off}", 'w')
    def seeds():
        SC = [(W1, 1.0), (W8, 8.0), (W256, 256.0)]
        R = [T + 2 + 5 * i for i in range(3)]
        for (dst, sc), r in zip(SC, R):
            if sc == 1.0:
                a(f"v_exp_f32 v{r}, v{T}")
                a(f"v_rndne_f32 v{r+2}, v{T+1}")
                a(f"v_sub_f32 v{r+1}, v{T+1}, v{r+2}")
            else:
                a(f"v_mul_f32 v{r}, {flit(sc)}, v{T}")
                a(f"v_mul_f32 v{r+1}, {flit(sc)}, v{T+1}")
        for (dst, sc), r in zip(SC, R):
            if sc != 1.0:
                a(f"v_exp_f32 v{r}, v{r}")
                a(f"v_rndne_f32 v{r+2}, v{r+1}")
                a(f"v_sub_f32 v{r+1}, v{r+1}, v{r+2}")
        for (dst, sc), r in zip(SC, R):
            a(f"v_cos_f32 v{r+3}, v{r+1}")
            a(f"v_sin_f32 v{r+4}, v{r+1}")
        a("s_nop 0")
        for (dst, sc), r in zip(SC, R):
            a(f"v_mul_f32 v{dst}, v{r}, v{r+3}")
            a(f"v_mul_f32 v{dst+1}, v{r}, v{r+4}")
    def mfma(s_):
        a.wait_lg(('fa', s_), ('fb', s_))
        a(f"v_mfma_f32_32x32x16_bf16 {v(ACC,16)}, {v(F+8*s_,4)}, {v(F+8*s_+4,4)}, {v(ACC,16)}")
    def frag_reads():
        for s_ in range(8):
            a.lds(f"ds_read_b128 {v(F+8*s_,4)}, v6 offset:{32*s_}", ('fa', s_))
            a.lds(f"ds_read_b128 {v(F+8*s_+4,4)}, v6 offset:{KG_Y + 32*s_}", ('fb', s_))
    for ch in range(3):
        p = P + 6 * ch
        a.wait_vm(('p', ch))
        for t in range(6): a(f"v_lshlrev_b32 v{p+t}, 16, v{p+t}")
        a(f"v_mul_f32 v{T}, v3, v{p}")
        a(f"v_mul_f32 v{T+1}, v3, v{p+1}")
        a(f"v_mul_f32 v{p+2}, v3, v{p+2}")
        a(f"v_mul_f32 v{p+3}, v3, v{p+3}")
        a(f"v_mul_f32 v{T}, s44, v{T}")
        a(f"v_mul_f32 v{T+1}, 0.15915494, v{T+1}")
        a(f"v_mul_f32 v{C}, v{p+4}, v{p+2}")
        a(f"v_mul_f32 v{C+1}, v{p+4}, v{p+3}")
        a(f"v_fma_f32 v{C}, -v{p+5}, v{p+3}, v{C}")
        a(f"v_fma_f32 v{C+1}, v{p+5}, v{p+2}, v{C+1}")
        seeds()
        cmul1(a, TX, W1, W1); cmul1(a, TA, W8, W8)
        cmul2(a, W2, W1, W1, TX); cmul2(a, W128, W8, W8, TA)
        cmul1(a, TX, W2, W2); cmul1(a, TA, W128, W128)
        cmul2(a, W4, W2, W2, TX); cmul2(a, W128, W128, W128, TA)
        for _ in range(2): cmul(a, W128, W128, W128, TA)
        xs = [('put', C, 0)]
        prev = C
        for i in range(1, 8): xs.append(('mul', X, prev, W1, i)); prev = X
        xs.append(('mul', XB, C, W256, 8)); prev = XB
        for i in range(9, 12): xs.append(('mul', X, prev, W2, i)); prev = X
        xs.append(('mul', XB, XB, W256, 12)); xs.append(('mul', X, XB, W4, 13))
        xs.append(('mul', XB, XB, W256, 14)); xs.append(('mul', X, XB, W4, 15))
        for i in range(16, 21): xs.append(('mul', XB, XB, W256, i))
        ya = [('one',), ('put', W8, 1), ('mul', YA, W8, W8, 2)] + [('mul', YA, YA, W8, b) for b in range(3, 16)]
        yb = [('put', W128, 16), ('mul', YB, W128, W8, 17)] + [('mul', YB, YB, W8, b) for b in range(18, 32)]
        for i in range(21):
            steps = []
            if i < len(xs): steps.append((xs[i], True, TX))
            if i < len(ya): steps.append((ya[i], False, TA))
            if i < len(yb): steps.append((yb[i], False, TB_))
            for st_, isx, tmp in steps:
                if st_[0] == 'mul': cmul1(a, tmp, st_[2], st_[3])
            for st_, isx, tmp in steps:
                if st_[0] == 'mul': cmul2(a, st_[1], st_[2], st_[3], tmp)
            if ch > 0 and 1 <= i <= 8: mfma(i - 1)
            for st_, isx, tmp in steps:
                off = lambda r: 272 * r + (0 if isx else KG_Y)
                if st_[0] == 'one':
                    if ch == 0:
                        a(f"v_mov_b32 v{O+6}, 0x3f80")
                        a.lds(f"ds_write_addtid_b32 v{O+6} offset:{off(0)}", 'w')
                elif st_[0] == 'put': put(off(st_[2]), st_[1], isx)
                else: put(off(st_[4]), st_[1], isx)
        frag_reads()
        if st and ch < 2: st.stamp()
    for s_ in range(8): mfma(s_)

def kgen_store_tab(a, sm='sc1'):
    ACC = KG_ACC
    a(f"s_load_dwordx2 s[32:33], s[0:1], {KA['ws']}")
    a("v_and_b32 v8, 31, v1")
    a("v_lshrrev_b32 v9, 5, v1")
    a("v_cmp_eq_u32 s[48:49], 1, v9")
    a("v_lshlrev_b32 v10, 5, v8")
    a("v_lshl_add_u32 v10, v9, 4, v10")
    a("v_lshlrev_b32 v11, 4, v8")
    a("v_add_u32 v11, 1024, v11")
    a("v_lshlrev_b32 v12, 3, v8")
    a("v_add_u32 v13, 1536, v12")
    a("v_add_u32 v14, 1792, v12")
    a("v_add_u32 v15, 8, v11")
    a("v_cndmask_b32 v13, v11, v13, s[48:49]")
    a("v_cndmask_b32 v14, v15, v14, s[48:49]")
    a("v_lshlrev_b32 v15, 2, v8")
    a("v_lshl_add_u32 v15, v9, 9, v15")
    a("v_add_u32 v15, 2048, v15")
    for r in range(4): a(f"v_mov_b32 v{16+r}, 0")
    a("v_mov_b32 v20, 0")
    a("s_waitcnt lgkmcnt(0)"); a.lg = []
    srd(a, 36, 32, 33, SZ_TB, WS_TB)
    a(f"s_mul_i32 s50, s40, {TB_ROW}")
    a("s_add_u32 s51, s50, 16")
    a("s_mov_b64 exec, 1")
    a.vmem(f"buffer_store_dwordx4 v[16:19], v20, s[36:39], s50 offen {sm}", 'st')
    a("s_mov_b64 exec, -1")
    a.vmem(f"buffer_store_dwordx4 {v(ACC,4)}, v10, s[36:39], s51 offen {sm}", 'st')
    a.vmem(f"buffer_store_dwordx2 {v(ACC+4,2)}, v13, s[36:39], s51 offen {sm}", 'st')
    a.vmem(f"buffer_store_dwordx2 {v(ACC+6,2)}, v14, s[36:39], s51 offen {sm}", 'st')
    a("s_mov_b32 exec_hi, 1")
    a.vmem(f"buffer_store_dword v{ACC+8}, v15, s[36:39], s51 offen {sm}", 'st')
    a("s_mov_b32 exec_hi, 0")
    for r in range(1, 4): a.vmem(f"buffer_store_dword v{ACC+8+r}, v15, s[36:39], s51 offen offset:{128*r} {sm}", 'st')
    a("s_mov_b64 exec, -1")

CP = 4160
CV_U = 4 * CP
CV_TB = CV_U + 4576
CV_STRIDE = CV_TB + 2688
def conv2(a, sm='sc1', st=None, flag=True):
    st = st or Stamps(a, False)
    A0 = 64; ACC = 192; B0 = 224; G0 = 28
    a(f"s_load_dwordx2 s[32:33], s[0:1], {KA['ws']}")
    a(f"s_load_dwordx2 s[28:29], s[0:1], {KA['Dsk']}")
    a("v_lshlrev_b32 v2, 4, v1")
    a("s_lshl_b32 s47, s40, 1")
    a("v_mov_b32 v3, s47")
    a(f"s_mul_i32 s45, s40, {TB_ROW}")
    a("s_lshl_b32 s46, s40, 12")
    a("s_waitcnt lgkmcnt(0)")
    srd(a, 8, 32, 33, SZ_TB, WS_TB)
    srd(a, 12, 32, 33, SZ_UT, WS_UT)
    for i in range(3):
        a(f"s_add_u32 m0, s43, {CV_TB + 1024*i}")
        a(f"s_add_u32 s47, s45, {1024*i}")
        if i == 2: a("s_mov_b32 exec_hi, 0xff")
        a.vmem("buffer_load_dwordx4 v2, s[8:11], s47 offen lds", 'tab')
    a("s_mov_b64 exec, -1")
    for i in range(4):
        a(f"s_add_u32 m0, s43, {CV_U + 480 + 1024*i}")
        a(f"s_add_u32 s47, s46, {1024*i}")
        a.vmem("buffer_load_dwordx4 v2, s[12:15], s47 offen lds", 'u')
    a.vmem("global_load_ushort v24, v3, s[28:29]", 'dsk')
    srd(a, 16, 32, 33, SZ_G, WS_G)
    srd(a, 36, 32, 33, SZ_T1, WS_T1)
    a("v_and_b32 v3, 15, v1")
    a("v_lshlrev_b32 v3, 4, v3")
    a("v_lshrrev_b32 v4, 4, v1")
    a("v_lshl_add_u32 v25, v4, 2, v3")
    a("v_lshlrev_b32 v3, 2, v25")
    for c in range(8):
        a(f"s_mov_b32 s47, {1024*c}")
        a.vmem(f"buffer_load_dwordx4 {v(G0+4*c,4)}, v3, s[16:19], s47 offen", 'g')
    for r in range(4): a(f"v_mov_b32 v{20+r}, 0")
    a("v_add_u32 v3, s43, v2")
    a("s_mov_b64 exec, 0x3fffffff")
    a.lds(f"ds_write_b128 v3, v[20:23] offset:{CV_U}", 'z')
    a("v_lshrrev_b32 v4, 1, v1")
    a(f"v_mul_u32_u24 v4, {CP}, v4")
    a("v_and_b32 v5, 1, v1")
    a("v_lshl_add_u32 v4, v5, 4, v4")
    a("v_add_u32 v4, s43, v4")
    a("s_mov_b64 exec, 0xff")
    a.lds(f"ds_write_b128 v4, v[20:23]", 'z')
    a("s_mov_b64 exec, -1")
    a("v_and_b32 v8, 31, v1")
    a("v_lshrrev_b32 v9, 5, v1")
    a("v_lshlrev_b32 v21, 2, v9")
    a(f"s_add_u32 s47, s43, {CV_TB + 16}")
    a(f"v_mul_u32_u24 v18, {CP}, v9")
    a("v_lshl_add_u32 v19, v8, 4, v18")
    a("v_add_u32 v19, s43, v19")
    a("v_add_u32 v19, 32, v19")
    a("v_cmp_eq_u32 s[48:49], 0, v8")
    a("v_cmp_eq_u32 s[50:51], 32, v1")
    a("v_lshlrev_b32 v10, 5, v8")
    a("v_add_u32 v10, s47, v10")
    a("v_sub_u32 v10, v10, v21")
    a("v_add_u32 v10, -8, v10")
    a("v_lshlrev_b32 v11, 4, v8")
    a("v_add_u32 v11, s47, v11")
    a("v_add_u32 v11, 1024, v11")
    a("v_sub_u32 v12, v11, v21")
    a("v_add_u32 v13, -4, v11")
    a("v_cndmask_b32 v13, v11, v13, s[50:51]")
    a("v_add_u32 v14, -4, v12")
    a("v_add_u32 v15, -8, v12")
    a("v_cndmask_b32 v14, v14, v15, s[48:49]")
    a("v_lshlrev_b32 v15, 3, v8")
    a("v_add_u32 v15, s47, v15")
    a("v_add_u32 v15, 1536, v15")
    a("v_sub_u32 v16, v15, v21")
    a("v_add_u32 v17, -4, v16")
    a("v_cndmask_b32 v17, v16, v17, s[48:49]")
    a("v_add_u32 v22, -4, v15")
    a("v_cndmask_b32 v22, v15, v22, s[50:51]")
    a("v_lshlrev_b32 v23, 2, v8")
    a("v_add_u32 v23, s47, v23")
    a("v_add_u32 v23, 2048, v23")
    a("v_add_u32 v26, -4, v23")
    a("v_cndmask_b32 v26, v23, v26, s[50:51]")
    a("v_and_b32 v27, 1, v1")
    a("v_xor_b32 v60, 1, v9")
    a("v_and_b32 v60, v60, v27")
    a("v_cmp_eq_u32 s[52:53], 1, v60")
    a("v_xor_b32 v60, 1, v27")
    a("v_and_b32 v60, v60, v9")
    a("v_cmp_eq_u32 s[54:55], 1, v60")
    R = 64
    a.wait_vm('tab')
    rd = lambda txt, tag: a.lds(txt, tag)
    for e in range(5): rd(f"ds_read2_b32 {v(R+2*e,2)}, v10 offset0:{2*e} offset1:{2*e+1}", 0)
    rd(f"ds_read2_b32 {v(R+10,2)}, v12 offset0:1 offset1:2", 1)
    rd(f"ds_read2_b32 {v(R+12,2)}, v12 offset0:3 offset1:4", 1)
    rd(f"ds_read2_b32 {v(R+14,2)}, v11 offset0:0 offset1:2", 1)
    rd(f"ds_read_b32 v{R+16}, v13", 1)
    rd(f"ds_read2_b32 {v(R+18,2)}, v14 offset0:0 offset1:1", 1)
    for i in range(2):
        b = R + 20 + 8 * i
        rd(f"ds_read2_b32 {v(b,2)}, v15 offset0:{64*i} offset1:{64*i+1}", 2 + i)
        rd(f"ds_read_b32 v{b+2}, v15 offset:{256*i+8}", 2 + i)
        rd(f"ds_read2_b32 {v(b+4,2)}, v16 offset0:{64*i+1} offset1:{64*i+2}", 2 + i)
        if i == 0:
            rd(f"ds_read_b32 v{b+6}, v17", 2); rd(f"ds_read_b32 v{b+7}, v22", 2)
        else:
            rd(f"ds_read_b32 v{b+6}, v16 offset:256", 3)
    for i in range(4):
        b = R + 36 + 4 * i
        rd(f"ds_read2_b32 {v(b,2)}, v23 offset0:{32*i} offset1:{32*i+1}", 4 + i)
        if i == 0: rd(f"ds_read_b32 v{b+2}, v26", 4)
    OUT = [128, 136, 144, 152]
    def emit(ps, d, dm1):
        o = OUT[ps % 4]
        for e in range(4): a(f"v_cvt_pk_bf16_f32 v{o+e}, v{d[e][0]}, v{d[e][1]}")
        seq = [dm1] + d[:3]
        for e in range(4): a(f"v_cvt_pk_bf16_f32 v{o+4+e}, v{seq[e][0]}, v{seq[e][1]}")
        a.lds(f"ds_write_b128 v19, {v(o,4)} offset:{512*ps}", 'w')
        a.lds(f"ds_write_b128 v19, {v(o+4,4)} offset:{512*ps + 2*CP}", 'w')
    a.wait_lg(0)
    emit(0, [(R+2+2*e, R+3+2*e) for e in range(4)], (R, R+1))
    a.wait_lg(1)
    emit(1, [(R+16, R+14), (R+10, R+11), (R+15, R+15), (R+12, R+13)], (R+18, R+19))
    for i in range(2):
        b = R + 20 + 8 * i
        a.wait_lg(2 + i)
        dm1 = (b+6, b+7) if i == 0 else (b+6, b)
        emit(2 + i, [(b, b), (b, b+4), (b+1, b+1), (b+5, b+2)], dm1)
    for i in range(4):
        b = R + 36 + 4 * i
        a.wait_lg(4 + i)
        a(f"v_cndmask_b32 v60, v{b}, v{b+1}, s[52:53]")
        a(f"v_cndmask_b32 v61, v{b+1}, v{b}, s[54:55]")
        dm1 = (b+2, b) if i == 0 else (b, b)
        emit(4 + i, [(b, b), (b, b), (60, 61), (b+1, b+1)], dm1)
    a("v_bfe_u32 v3, v1, 2, 2")
    a(f"v_mul_u32_u24 v3, {CP}, v3")
    a("v_lshrrev_b32 v4, 4, v1")
    a("v_lshlrev_b32 v5, 4, v4")
    a("v_sub_u32 v3, v3, v5")
    a("v_and_b32 v5, 3, v1")
    a("v_lshl_add_u32 v3, v5, 3, v3")
    a("v_add_u32 v3, 56, v3")
    a("v_add_u32 v6, s43, v3")
    a("v_and_b32 v3, 15, v1")
    a("v_lshlrev_b32 v3, 5, v3")
    a("v_lshl_add_u32 v3, v4, 4, v3")
    a(f"v_add_u32 v3, {CV_U}, v3")
    a("v_add_u32 v7, s43, v3")
    for r in range(32): a(f"v_mov_b32 v{ACC+r}, 0")
    def loadA(beta):
        bp = beta % 32
        for half in range(2):
            a.lds(f"ds_read_b64_tr_b16 {v(A0+4*bp+2*half,2)}, v6 offset:{64*beta + 8*(1-half)}", ('A', beta))
    def loadB(z, slot):
        a.lds(f"ds_read_b128 {v(B0+4*slot,4)}, v7 offset:{448 - 64*z}", ('B', z))
    st.stamp()
    a.wait_vm('u')
    st.stamp()
    def phase(ph):
        zs = list(range(7, -57 if ph == 0 else -25, -1))
        def needA(z): return [z + 8 * c for c in range(8) if 32 * ph <= z + 8 * c < 32 * ph + 32]
        loadedA = set()
        if ph == 0:
            for n in range(2):
                for b in needA(zs[n]): loadA(b); loadedA.add(b)
        for n in range(3): loadB(zs[n], n % 4)
        for n, z in enumerate(zs):
            if n + 3 < len(zs): loadB(zs[n + 3], (n + 3) % 4)
            if ph == 0 and n + 2 < len(zs):
                for b in needA(zs[n + 2]):
                    if b not in loadedA: loadA(b); loadedA.add(b)
            a.wait_lg(('B', z))
            for c in range(8):
                beta = z + 8 * c
                if not (32 * ph <= beta < 32 * ph + 32): continue
                a.wait_lg(('A', beta))
                a(f"v_mfma_f32_16x16x32_bf16 {v(ACC+4*c,4)}, {v(A0+4*(beta % 32),4)}, {v(B0+4*(n%4),4)}, {v(ACC+4*c,4)}")
            if ph == 0:
                bp = z + 56
                if 0 <= bp < 32: loadA(32 + bp)
    phase(0)
    st.stamp()
    phase(1)
    st.stamp()
    a("v_lshlrev_b32 v5, 1, v25")
    a(f"v_add_u32 v26, {CV_U + 480}, v5")
    a("v_add_u32 v26, s43, v26")
    U0 = 64
    for c in range(8): a.lds(f"ds_read_b64 {v(U0+2*c,2)}, v26 offset:{512*c}", ('uu', c))
    a.wait_vm('dsk', 'g')
    a("v_lshlrev_b32 v24, 16, v24")
    a("s_mov_b32 s48, 0xffff0000")
    for c in range(8):
        a.wait_lg(('uu', c))
        T = 96 + 16 * (c % 2); y = ACC + 4 * c; u0 = U0 + 2 * c; g0 = G0 + 4 * c
        a(f"v_lshlrev_b32 v{T}, 16, v{u0}")
        a(f"v_and_b32 v{T+1}, s48, v{u0}")
        a(f"v_lshlrev_b32 v{T+2}, 16, v{u0+1}")
        a(f"v_and_b32 v{T+3}, s48, v{u0+1}")
        for r in range(4): a(f"v_mul_f32 v{T+r}, v24, v{T+r}")
        a(f"v_cvt_pk_bf16_f32 v{T+4}, v{T}, v{T+1}")
        a(f"v_cvt_pk_bf16_f32 v{T+5}, v{T+2}, v{T+3}")
        a(f"v_cvt_pk_bf16_f32 v{T+6}, v{y}, v{y+1}")
        a(f"v_cvt_pk_bf16_f32 v{T+7}, v{y+2}, v{y+3}")
        for h in range(2):
            a(f"v_lshlrev_b32 v{T+8}, 16, v{T+4+h}")
            a(f"v_and_b32 v{T+9}, s48, v{T+4+h}")
            a(f"v_lshlrev_b32 v{T+10}, 16, v{T+6+h}")
            a(f"v_and_b32 v{T+11}, s48, v{T+6+h}")
            a(f"v_add_f32 v{T+8}, v{T+8}, v{T+10}")
            a(f"v_add_f32 v{T+9}, v{T+9}, v{T+11}")
            a(f"v_cvt_pk_bf16_f32 v{T+8}, v{T+8}, v{T+9}")
            a(f"v_and_b32 v{T+9}, s48, v{T+8}")
            a(f"v_lshlrev_b32 v{T+8}, 16, v{T+8}")
            a(f"v_mul_f32 v{T+8}, v{g0+2*h}, v{T+8}")
            a(f"v_mul_f32 v{T+9}, v{g0+2*h+1}, v{T+9}")
            a(f"v_cvt_pk_bf16_f32 v{T+12+h}, v{T+8}, v{T+9}")
        a(f"s_add_u32 s47, s46, {512*c}")
        a.vmem(f"buffer_store_dwordx2 {v(T+12,2)}, v5, s[36:39], s47 offen {sm}", 'st')
    if flag:
        srd(a, 8, 32, 33, SZ_FL, WS_FL)
        a("v_mov_b32 v3, 0")
        a("v_mov_b32 v4, 1")
        a("s_lshl_b32 s47, s40, 2")
        a.wait_vm_all()
        a("s_mov_b64 exec, 1")
        a.vmem("buffer_store_dword v4, v3, s[8:11], s47 offen sc1", 'fl')
        a("s_mov_b64 exec, -1")
```

```python
from common import *
import sync
from ssm import kgen_core, KG_ACC, L2E
CP = 4160; CV_U = 4 * CP; CV_TB = CV_U + 4576; CV_STRIDE = CV_TB + 2592
TASK_LDS = 3 * CV_STRIDE

def channel_wave(a, sm='sc1', st=None, flag_out=False, late_prio=None):
    st = st or Stamps(a, False)
    A0 = 64; ACC = 192; B0 = 224
    a(f"s_load_dwordx2 s[32:33], s[0:1], {KA['ws']}")
    def pre():
        a.vmem("global_load_ushort v5, v4, s[30:31]", 'dsk')
    kgen_core(a, pre=pre, st=st)
    st.stamp()
    a("v_mov_b32 v24, v5")
    T0 = KG_ACC
    a(f"s_add_u32 s47, s43, {CV_TB + 16}")
    a("v_and_b32 v8, 31, v1")
    a("v_lshrrev_b32 v9, 5, v1")
    a("v_cmp_eq_u32 s[48:49], 1, v9")
    a("v_lshlrev_b32 v10, 5, v8")
    a("v_lshl_add_u32 v10, v9, 4, v10")
    a("v_add_u32 v10, s47, v10")
    a("v_lshlrev_b32 v11, 4, v8")
    a("v_add_u32 v11, 1024, v11")
    a("v_lshlrev_b32 v12, 3, v8")
    a("v_add_u32 v13, 1536, v12")
    a("v_add_u32 v14, 1792, v12")
    a("v_add_u32 v15, 8, v11")
    a("v_cndmask_b32 v13, v11, v13, s[48:49]")
    a("v_cndmask_b32 v14, v15, v14, s[48:49]")
    a("v_add_u32 v13, s47, v13")
    a("v_add_u32 v14, s47, v14")
    a("v_lshlrev_b32 v15, 2, v8")
    a("v_lshl_add_u32 v15, v9, 9, v15")
    a("v_add_u32 v15, 2048, v15")
    a("v_add_u32 v15, s47, v15")
    for r in range(4): a(f"v_mov_b32 v{20+r}, 0")
    a("v_mov_b32 v16, s47")
    a("v_add_u32 v16, -16, v16")
    a.lds(f"ds_write_b128 v10, {v(T0,4)}", 'w')
    a.lds(f"ds_write_b64 v13, {v(T0+4,2)}", 'w')
    a.lds(f"ds_write_b64 v14, {v(T0+6,2)}", 'w')
    a("s_mov_b32 exec_hi, 1")
    a.lds(f"ds_write_b32 v15, v{T0+8}", 'w')
    a("s_mov_b32 exec_hi, 0")
    for r in range(1, 4): a.lds(f"ds_write_b32 v15, v{T0+8+r} offset:{128*r}", 'w')
    a("s_mov_b64 exec, 1")
    a.lds("ds_write_b128 v16, v[20:23]", 'w')
    a("v_lshlrev_b32 v2, 4, v1")
    a("s_mov_b64 exec, -1")
    a("v_lshlrev_b32 v2, 4, v1")
    a("v_add_u32 v3, s43, v2")
    a("s_mov_b64 exec, 0x3fffffff")
    a.lds(f"ds_write_b128 v3, v[20:23] offset:{CV_U}", 'z')
    a("s_mov_b64 exec, -1")
    a("v_lshrrev_b32 v4, 1, v1")
    a(f"v_mul_u32_u24 v4, {CP}, v4")
    a("v_and_b32 v5, 1, v1")
    a("v_lshl_add_u32 v4, v5, 4, v4")
    a("v_add_u32 v4, s43, v4")
    a("s_mov_b64 exec, 0xff")
    a.lds(f"ds_write_b128 v4, v[20:23]", 'z')
    a("s_mov_b64 exec, -1")
    srd(a, 12, 32, 33, SZ_UT, WS_UT)
    sync.flag_srd(a, 8, 32, 33)
    sync.get_nonce(a)
    a("s_lshr_b32 s45, s40, 6")
    a("s_lshl_b32 s45, s45, 6")
    a(f"s_add_u32 s45, s45, {sync.FL_UT}")
    sync.wait_flags(a, 8, 45, 16)
    st.stamp()
    a("s_lshl_b32 s46, s40, 12")
    for i in range(4):
        a(f"s_add_u32 m0, s43, {CV_U + 480 + 1024*i}")
        a(f"s_add_u32 s45, s46, {1024*i}")
        a.vmem("buffer_load_dwordx4 v2, s[12:15], s45 offen sc1 lds", 'u')
    srd(a, 36, 32, 33, SZ_T1, WS_T1)
    a("v_lshlrev_b32 v21, 2, v9")
    a(f"v_mul_u32_u24 v18, {CP}, v9")
    a("v_lshl_add_u32 v19, v8, 4, v18")
    a("v_add_u32 v19, s43, v19")
    a("v_add_u32 v19, 32, v19")
    a("v_cmp_eq_u32 s[48:49], 0, v8")
    a("v_cmp_eq_u32 s[50:51], 32, v1")
    a("v_lshlrev_b32 v10, 5, v8")
    a("v_add_u32 v10, s47, v10")
    a("v_sub_u32 v10, v10, v21")
    a("v_add_u32 v10, -8, v10")
    a("v_lshlrev_b32 v11, 4, v8")
    a("v_add_u32 v11, s47, v11")
    a("v_add_u32 v11, 1024, v11")
    a("v_sub_u32 v12, v11, v21")
    a("v_add_u32 v13, -4, v11")
    a("v_cndmask_b32 v13, v11, v13, s[50:51]")
    a("v_add_u32 v14, -4, v12")
    a("v_add_u32 v15, -8, v12")
    a("v_cndmask_b32 v14, v14, v15, s[48:49]")
    a("v_lshlrev_b32 v15, 3, v8")
    a("v_add_u32 v15, s47, v15")
    a("v_add_u32 v15, 1536, v15")
    a("v_sub_u32 v16, v15, v21")
    a("v_add_u32 v17, -4, v16")
    a("v_cndmask_b32 v17, v16, v17, s[48:49]")
    a("v_add_u32 v22, -4, v15")
    a("v_cndmask_b32 v22, v15, v22, s[50:51]")
    a("v_lshlrev_b32 v23, 2, v8")
    a("v_add_u32 v23, s47, v23")
    a("v_add_u32 v23, 2048, v23")
    a("v_add_u32 v26, -4, v23")
    a("v_cndmask_b32 v26, v23, v26, s[50:51]")
    a("v_and_b32 v27, 1, v1")
    a("v_xor_b32 v60, 1, v9")
    a("v_and_b32 v60, v60, v27")
    a("v_cmp_eq_u32 s[52:53], 1, v60")
    a("v_xor_b32 v60, 1, v27")
    a("v_and_b32 v60, v60, v9")
    a("v_cmp_eq_u32 s[54:55], 1, v60")
    R = 64
    rd = lambda txt, tag: a.lds(txt, tag)
    for e in range(5): rd(f"ds_read2_b32 {v(R+2*e,2)}, v10 offset0:{2*e} offset1:{2*e+1}", 0)
    rd(f"ds_read2_b32 {v(R+10,2)}, v12 offset0:1 offset1:2", 1)
    rd(f"ds_read2_b32 {v(R+12,2)}, v12 offset0:3 offset1:4", 1)
    rd(f"ds_read2_b32 {v(R+14,2)}, v11 offset0:0 offset1:2", 1)
    rd(f"ds_read_b32 v{R+16}, v13", 1)
    rd(f"ds_read2_b32 {v(R+18,2)}, v14 offset0:0 offset1:1", 1)
    for i in range(2):
        b = R + 20 + 8 * i
        rd(f"ds_read2_b32 {v(b,2)}, v15 offset0:{64*i} offset1:{64*i+1}", 2 + i)
        rd(f"ds_read_b32 v{b+2}, v15 offset:{256*i+8}", 2 + i)
        rd(f"ds_read2_b32 {v(b+4,2)}, v16 offset0:{64*i+1} offset1:{64*i+2}", 2 + i)
        if i == 0:
            rd(f"ds_read_b32 v{b+6}, v17", 2); rd(f"ds_read_b32 v{b+7}, v22", 2)
        else:
            rd(f"ds_read_b32 v{b+6}, v16 offset:256", 3)
    for i in range(4):
        b = R + 36 + 4 * i
        rd(f"ds_read2_b32 {v(b,2)}, v23 offset0:{32*i} offset1:{32*i+1}", 4 + i)
        if i == 0: rd(f"ds_read_b32 v{b+2}, v26", 4)
    OUT = [128, 136, 144, 152]
    def emit(ps, d, dm1):
        o = OUT[ps % 4]
        for e in range(4): a(f"v_cvt_pk_bf16_f32 v{o+e}, v{d[e][0]}, v{d[e][1]}")
        seq = [dm1] + d[:3]
        for e in range(4): a(f"v_cvt_pk_bf16_f32 v{o+4+e}, v{seq[e][0]}, v{seq[e][1]}")
        a.lds(f"ds_write_b128 v19, {v(o,4)} offset:{512*ps}", 'w')
        a.lds(f"ds_write_b128 v19, {v(o+4,4)} offset:{512*ps + 2*CP}", 'w')
    a.wait_lg(0)
    emit(0, [(R+2+2*e, R+3+2*e) for e in range(4)], (R, R+1))
    a.wait_lg(1)
    emit(1, [(R+16, R+14), (R+10, R+11), (R+15, R+15), (R+12, R+13)], (R+18, R+19))
    for i in range(2):
        b = R + 20 + 8 * i
        a.wait_lg(2 + i)
        dm1 = (b+6, b+7) if i == 0 else (b+6, b)
        emit(2 + i, [(b, b), (b, b+4), (b+1, b+1), (b+5, b+2)], dm1)
    for i in range(4):
        b = R + 36 + 4 * i
        a.wait_lg(4 + i)
        a(f"v_cndmask_b32 v60, v{b}, v{b+1}, s[52:53]")
        a(f"v_cndmask_b32 v61, v{b+1}, v{b}, s[54:55]")
        dm1 = (b+2, b) if i == 0 else (b, b)
        emit(4 + i, [(b, b), (b, b), (60, 61), (b+1, b+1)], dm1)
    a("v_bfe_u32 v3, v1, 2, 2")
    a(f"v_mul_u32_u24 v3, {CP}, v3")
    a("v_lshrrev_b32 v4, 4, v1")
    a("v_lshlrev_b32 v5, 4, v4")
    a("v_sub_u32 v3, v3, v5")
    a("v_and_b32 v5, 3, v1")
    a("v_lshl_add_u32 v3, v5, 3, v3")
    a("v_add_u32 v3, 56, v3")
    a("v_add_u32 v6, s43, v3")
    a("v_and_b32 v3, 15, v1")
    a("v_lshlrev_b32 v25, 4, v3")
    a("v_lshl_add_u32 v25, v4, 2, v25")
    a("v_lshlrev_b32 v3, 5, v3")
    a("v_lshl_add_u32 v3, v4, 4, v3")
    a(f"v_add_u32 v3, {CV_U}, v3")
    a("v_add_u32 v7, s43, v3")
    for r in range(32): a(f"v_mov_b32 v{ACC+r}, 0")
    def loadA(beta):
        bp = beta % 32
        for half in range(2):
            a.lds(f"ds_read_b64_tr_b16 {v(A0+4*bp+2*half,2)}, v6 offset:{64*beta + 8*(1-half)}", ('A', beta))
    def loadB(z, slot):
        a.lds(f"ds_read_b128 {v(B0+4*slot,4)}, v7 offset:{448 - 64*z}", ('B', z))
    st.stamp()
    if late_prio is not None: a(f"s_setprio {late_prio}")
    def phase(ph):
        zs = list(range(7, -57 if ph == 0 else -25, -1))
        def needA(z): return [z + 8 * c for c in range(8) if 32 * ph <= z + 8 * c < 32 * ph + 32]
        loadedA = set()
        if ph == 0:
            for n in range(2):
                for b in needA(zs[n]): loadA(b); loadedA.add(b)
            a.wait_vm('u')
        for n in range(3): loadB(zs[n], n % 4)
        for n, z in enumerate(zs):
            if n + 3 < len(zs): loadB(zs[n + 3], (n + 3) % 4)
            if ph == 0 and n + 2 < len(zs):
                for b in needA(zs[n + 2]):
                    if b not in loadedA: loadA(b); loadedA.add(b)
            a.wait_lg(('B', z))
            for c in range(8):
                beta = z + 8 * c
                if not (32 * ph <= beta < 32 * ph + 32): continue
                a.wait_lg(('A', beta))
                a(f"v_mfma_f32_16x16x32_bf16 {v(ACC+4*c,4)}, {v(A0+4*(beta % 32),4)}, {v(B0+4*(n%4),4)}, {v(ACC+4*c,4)}")
            if ph == 0:
                bp = z + 56
                if 0 <= bp < 32: loadA(32 + bp)
    phase(0)
    phase(1)
    st.stamp()
    a("v_lshlrev_b32 v5, 1, v25")
    a(f"v_add_u32 v26, {CV_U + 480}, v5")
    a("v_add_u32 v26, s43, v26")
    U0 = 64
    for c in range(8): a.lds(f"ds_read_b64 {v(U0+2*c,2)}, v26 offset:{512*c}", ('uu', c))
    a("v_lshlrev_b32 v24, 16, v24")
    a("s_mov_b32 s48, 0xffff0000")
    for c in range(8):
        a.wait_lg(('uu', c))
        T = 96 + 16 * (c % 2); y = ACC + 4 * c; u0 = U0 + 2 * c
        a(f"v_lshlrev_b32 v{T}, 16, v{u0}")
        a(f"v_and_b32 v{T+1}, s48, v{u0}")
        a(f"v_lshlrev_b32 v{T+2}, 16, v{u0+1}")
        a(f"v_and_b32 v{T+3}, s48, v{u0+1}")
        for r in range(4): a(f"v_mul_f32 v{T+r}, v24, v{T+r}")
        a(f"v_cvt_pk_bf16_f32 v{T+4}, v{T}, v{T+1}")
        a(f"v_cvt_pk_bf16_f32 v{T+5}, v{T+2}, v{T+3}")
        a(f"v_cvt_pk_bf16_f32 v{T+6}, v{y}, v{y+1}")
        a(f"v_cvt_pk_bf16_f32 v{T+7}, v{y+2}, v{y+3}")
        for h in range(2):
            a(f"v_lshlrev_b32 v{T+8}, 16, v{T+4+h}")
            a(f"v_and_b32 v{T+9}, s48, v{T+4+h}")
            a(f"v_lshlrev_b32 v{T+10}, 16, v{T+6+h}")
            a(f"v_and_b32 v{T+11}, s48, v{T+6+h}")
            a(f"v_add_f32 v{T+8}, v{T+8}, v{T+10}")
            a(f"v_add_f32 v{T+9}, v{T+9}, v{T+11}")
            a(f"v_cvt_pk_bf16_f32 v{T+12+h}, v{T+8}, v{T+9}")
        a(f"s_add_u32 s47, s46, {512*c}")
        a.vmem(f"buffer_store_dwordx2 {v(T+12,2)}, v5, s[36:39], s47 offen {sm}", 'st')
    if flag_out:
        a("s_lshl_b32 s47, s40, 2")
        a(f"s_add_u32 s47, s47, {sync.FL_A}")
        sync.set_flag(a, 8, 47)

def t3q(a, ldsbase, sm='sc1', flag=False, nt=True, want_nonce=False):
    a(f"s_load_dwordx2 s[8:9], s[0:1], {KA['wd']}")
    a(f"s_load_dwordx2 s[32:33], s[0:1], {KA['ws']}")
    if want_nonce: a(f"s_load_dwordx2 s[60:61], s[0:1], {KA['dbg']}")
    a("s_mov_b32 s45, 3277")
    a("v_mul_u32_u24 v2, s45, v1")
    a("v_lshrrev_b32 v2, 16, v2")
    a("v_mul_u32_u24 v3, 20, v2")
    a("v_sub_u32 v3, v1, v3")
    a("v_mul_u32_u24 v2, 1280, v2")
    a("v_lshl_add_u32 v2, v3, 4, v2")
    a(f"s_mul_i32 s44, s40, {32*1280}")
    a("s_mul_i32 s45, s41, 320")
    a("s_add_u32 s44, s44, s45")
    a("s_waitcnt lgkmcnt(0)")
    srd(a, 8, 8, 9, 1536 * 1280)
    srd(a, 36, 32, 33, SZ_W2, WS_W2)
    a("s_mov_b32 exec_hi, 0xfffffff")
    for i in range(11):
        a(f"s_add_u32 m0, s{ldsbase}, {960*i}")
        if i: a(f"s_add_u32 s44, s44, {3*1280}")
        if i == 10: a("s_mov_b32 exec_hi, 0xff")
        a("s_nop 0")
        a.vmem(f"buffer_load_dwordx4 v2, s[8:11], s44 offen {'nt ' if nt else ''}lds", 'x')
    a("s_mov_b64 exec, -1")
    if want_nonce:
        a("v_mov_b32 v250, 0")
        a.vmem("global_load_dword v251, v250, s[60:61] sc1", 'nonce')
    a("v_lshrrev_b32 v4, 5, v1")
    a("v_lshlrev_b32 v4, 4, v4")
    a("v_bfe_u32 v5, v1, 4, 1")
    a("v_lshl_add_u32 v4, v5, 2, v4")
    a("v_bfe_u32 v5, v1, 2, 2")
    a("v_add_u32 v4, v4, v5")
    a("v_mul_u32_u24 v4, 320, v4")
    a("v_and_b32 v5, 3, v1")
    a("v_lshl_add_u32 v4, v5, 3, v4")
    a(f"v_add_u32 v4, s{ldsbase}, v4")
    a("v_lshlrev_b32 v6, 4, v1")
    a(f"s_mul_i32 s46, s41, {2*48*5*1024}")
    a(f"s_mul_i32 s47, s40, {5*1024}")
    a("s_add_u32 s46, s46, s47")
    a.wait_vm('x')
    n = 0
    for dti in range(2):
        for dt in range(5):
            b = 8 + 4 * (n % 4); n += 1
            for h in range(2):
                a.lds(f"ds_read_b64_tr_b16 {v(b+2*h,2)}, v4 offset:{2*(80*dti+16*dt) + 8*320*h}", 'r')
            a(f"s_add_u32 s47, s46, {(dti*48*5 + dt)*1024}")
            a.wait_lg('r')
            a.vmem(f"buffer_store_dwordx4 {v(b,4)}, v6, s[36:39], s47 offen {sm}", 'st')
    if flag:
        if want_nonce:
            lab = a.newlabel('L_t3_nonce')
            a.wait_vm('nonce')
            a(f"v_readfirstlane_b32 s{sync.NONCE}, v251")
            a(f"s_cmp_lg_u32 s{sync.NONCE}, 0")
            a(f"s_cbranch_scc1 {lab}")
            sync.get_nonce(a)
            a.label(lab)
        sync.flag_srd(a, 8, 32, 33)
        a("s_mul_i32 s47, s41, 48")
        a("s_add_u32 s47, s47, s40")
        a("s_lshl_b32 s47, s47, 2")
        a(f"s_add_u32 s47, s47, {sync.FL_W2}")
        sync.set_flag(a, 8, 47)

def prefetch_setup(a):
    a(f"s_load_dwordx2 s[84:85], s[0:1], {KA['u']}")
    a(f"s_load_dwordx4 s[20:23], s[0:1], {KA['wg']}")
    a("s_lshr_b32 s92, s5, 2")
    a("s_lshl_b32 s92, s92, 10")
    a("s_lshl_b32 s93, s6, 5")
    a("s_add_u32 s92, s92, s93")
    a("s_mul_i32 s92, s92, 1280")
    a("v_and_b32 v240, 31, v1")
    a("v_mul_u32_u24 v240, 1280, v240")
    a("v_lshrrev_b32 v241, 5, v1")
    a("v_lshl_add_u32 v240, v241, 7, v240")
    a("s_and_b32 s93, s6, 15")
    a(f"s_mul_i32 s93, s93, {8*3072}")
    a("s_and_b32 s94, s5, 3")
    a("s_mul_i32 s94, s94, 768")
    a("s_add_u32 s93, s93, s94")
    a("s_mov_b32 s94, 43691")
    a("v_mul_u32_u24 v241, s94, v1")
    a("v_lshrrev_b32 v241, 18, v241")
    a("v_mul_u32_u24 v242, 6, v241")
    a("v_sub_u32 v242, v1, v242")
    a("v_mul_u32_u24 v241, 3072, v241")
    a("v_lshl_add_u32 v241, v242, 7, v241")
    a("s_waitcnt lgkmcnt(0)")
    srd(a, 84, 84, 85, 2048 * 1280)
    a("s_cmp_lt_u32 s6, 16")
    a("s_cselect_b32 s88, s20, s22")
    a("s_cselect_b32 s89, s21, s23")
    a(f"s_mov_b32 s90, {640*3072}")
    a(f"s_mov_b32 s91, {hex(SRD3)}")
def prefetch_issue(a, r):
    a(f"s_add_u32 s94, s93, {128*3072*r}")
    a("s_mov_b32 exec_hi, 0xffff")
    a("buffer_load_dword v243, v241, s[88:91], s94 offen")
    a("s_mov_b64 exec, -1")
    a(f"s_add_u32 s94, s92, {256*r}")
    a("buffer_load_dword v244, v240, s[84:87], s94 offen")

def t3q_touch(a):
    a(f"s_load_dwordx2 s[84:85], s[0:1], {KA['wd']}")
    a("v_and_b32 v240, 31, v1")
    a("v_mul_u32_u24 v240, 1280, v240")
    a("v_lshrrev_b32 v241, 5, v1")
    a("v_lshl_add_u32 v240, v241, 7, v240")
    a(f"s_mul_i32 s92, s40, {32*1280}")
    a("s_mul_i32 s93, s41, 320")
    a("s_add_u32 s92, s92, s93")
    a("s_waitcnt lgkmcnt(0)")
    srd(a, 84, 84, 85, 1536 * 1280)
    a("buffer_load_dword v243, v240, s[84:87], s92 offen")
    a("buffer_load_dword v244, v240, s[84:87], s92 offen offset:256")
```

```python
from common import *
FL_UT = 0
FL_G  = 1536
FL_W2 = 2048
FL_H  = 3072
FL_A  = 4096
SZ_FLS = 8192
NONCE = 58
import os as _os
SPIN = int(_os.environ.get('SPIN', '0x8000'), 0)
def publish_nonce(a, tmpv=250):
    a(f"s_load_dwordx2 s[60:61], s[0:1], {KA['dbg']}")
    a("s_memrealtime s[62:63]")
    a("s_waitcnt lgkmcnt(0)")
    a(f"s_or_b32 s{NONCE}, s62, 1")
    a(f"v_mov_b32 v{tmpv}, 0")
    a(f"v_mov_b32 v{tmpv+1}, s{NONCE}")
    a(f"global_store_dword v{tmpv}, v{tmpv+1}, s[60:61] sc1")
MARK = int(_os.environ.get('MARK', '0'))
_site = [0]
def mark_timeout(a, what):
    if not MARK: return
    _site[0] += 1
    print('timeout site', _site[0], what)
    a("s_mov_b64 exec, -1")
    a(f"s_load_dwordx2 s[94:95], s[0:1], {KA['ws']}")
    a("s_waitcnt lgkmcnt(0)")
    a("s_add_u32 s94, s94, 0x9000000")
    a("s_addc_u32 s95, s95, 0")
    a(f"v_mov_b32 v246, {4*_site[0]}")
    a("v_mov_b32 v247, s2")
    a("v_add_u32 v247, 1, v247")
    a("global_store_dword v246, v247, s[94:95]")
    a(f"v_mov_b32 v247, s{NONCE}")
    a("global_store_dword v246, v247, s[94:95] offset:128")
    a("v_mov_b32 v247, s4")
    a("global_store_dword v246, v247, s[94:95] offset:256")
def get_nonce(a, tmpv=250):
    lab = a.newlabel('L_nonce'); done = a.newlabel('L_nonced')
    a(f"s_load_dwordx2 s[60:61], s[0:1], {KA['dbg']}")
    a(f"v_mov_b32 v{tmpv}, 0")
    a("s_mov_b32 s59, 0")
    a("s_waitcnt lgkmcnt(0)"); a.lg = []
    a.label(lab)
    a(f"global_load_dword v{tmpv+1}, v{tmpv}, s[60:61] sc1")
    a("s_waitcnt vmcnt(0)"); a.vm = []
    a(f"v_readfirstlane_b32 s{NONCE}, v{tmpv+1}")
    a("s_add_u32 s59, s59, 1")
    a(f"s_cmp_lg_u32 s{NONCE}, 0")
    a(f"s_cbranch_scc1 {done}")
    a(f"s_cmp_lt_u32 s59, {SPIN}")
    to = a.newlabel('L_to')
    a(f"s_cbranch_scc0 {to}")
    a("s_sleep 2")
    a(f"s_branch {lab}")
    a.label(to)
    mark_timeout(a, 'nonce')
    a.label(done)
def flag_srd(a, base, wslo, wshi): srd(a, base, wslo, wshi, SZ_FLS, WS_FL)
def set_flag(a, sbase, soff_reg, tmpv=250):
    a(f"v_mov_b32 v{tmpv}, 0")
    a(f"v_mov_b32 v{tmpv+1}, s{NONCE}")
    a.wait_vm_all()
    a("s_mov_b64 exec, 1")
    a(f"buffer_store_dword v{tmpv+1}, v{tmpv}, s[{sbase}:{sbase+3}], s{soff_reg} offen sc1")
    a("s_mov_b64 exec, -1")
def wait_flags(a, sbase, soff_reg, nwords, tmpv=248, sleep=1):
    lab = a.newlabel('L_poll'); done = a.newlabel('L_polled')
    assert nwords <= 128
    wide = nwords > 64
    nl = nwords // 2 if wide else nwords
    a(f"v_lshlrev_b32 v{tmpv}, {3 if wide else 2}, v1")
    a("s_mov_b32 s59, 0")
    mask = (1 << nl) - 1
    a(f"s_mov_b32 exec_lo, {hex(mask & 0xffffffff)}")
    a(f"s_mov_b32 exec_hi, {hex(mask >> 32)}")
    a.label(lab)
    if wide:
        a(f"buffer_load_dwordx2 v[{tmpv+2}:{tmpv+3}], v{tmpv}, s[{sbase}:{sbase+3}], s{soff_reg} offen sc1")
        a("s_waitcnt vmcnt(0)")
        a(f"v_cmp_ne_u32 vcc, s{NONCE}, v{tmpv+2}")
        a(f"v_cmp_ne_u32 s[56:57], s{NONCE}, v{tmpv+3}")
        a("s_nop 1")
        a("s_or_b64 vcc, vcc, s[56:57]")
    else:
        a(f"buffer_load_dword v{tmpv+2}, v{tmpv}, s[{sbase}:{sbase+3}], s{soff_reg} offen sc1")
        a("s_waitcnt vmcnt(0)")
        a(f"v_cmp_ne_u32 vcc, s{NONCE}, v{tmpv+2}")
        a("s_nop 1")
    a("s_cmp_eq_u64 vcc, 0")
    a(f"s_cbranch_scc1 {done}")
    a("s_add_u32 s59, s59, 1")
    a(f"s_cmp_lt_u32 s59, {SPIN}")
    to = a.newlabel('L_to')
    a(f"s_cbranch_scc0 {to}")
    a(f"s_sleep {sleep}")
    a(f"s_branch {lab}")
    a.label(to)
    mark_timeout(a, f'flags s{soff_reg} n{nwords}')
    a.label(done)
    a("s_mov_b64 exec, -1")
    a.vm = []
```

```python
import sys, os
sys.path.insert(0, os.path.dirname(__file__))
from final import *
import kS
kw = dict(prio=3, prio2=3, ut_sleep=32)
l0, _ = kS.kernelS(**kw)
def mk(seq):
    launches = []
    for c in seq:
        if c == 'S': launches.append(('mix_s_kernel', 512, 256, 81920))
        elif c == 'E': launches.append(('mix_e_kernel', 1, 64, 0))
        elif c == 'B': launches.append(('mix_big_kernel', 512, 256, 81920))
    txt = header(launches)
    txt += head('mix_s_kernel') + '\n'.join(l0) + '\n' + kd('mix_s_kernel', sgpr=100)
    if 'E' in seq: txt += head('mix_e_kernel') + "s_endpgm\n" + kd('mix_e_kernel', vgpr=8, sgpr=16)
    if 'B' in seq: txt += head('mix_big_kernel') + "s_endpgm\n" + kd('mix_big_kernel', vgpr=256, sgpr=100)
    return txt
for seq in ('S', 'SS', 'ES', 'SE', 'BS', 'SSS'):
    open(f'L_{seq}.s', 'w').write(mk(seq))
```
